```python
import torch

def _softmax(x, axis=-1):
    return torch.softmax(x, dim=axis)
def _gelu(x):
    return torch.nn.functional.gelu(x, approximate="tanh")
def _silu(x):
    return torch.nn.functional.silu(x)
def _sigmoid(x):
    return torch.sigmoid(x)
def _layernorm(x, axis=-1, eps=1e-5):
    m = x.mean(dim=axis, keepdim=True)
    v = x.var(dim=axis, keepdim=True, unbiased=False)
    return (x - m) / torch.sqrt(v + eps)
def _scatter_add(tgt, idx, src, axis=0):
    return tgt.clone().index_add_(axis, idx, src)
def _segment_sum(src, seg, n):
    out = torch.zeros((n,) + src.shape[1:], dtype=src.dtype)
    return out.index_add_(0, seg, src)
def _pad(x, pw):
    flat = tuple(v for pair in reversed(pw) for v in pair)
    return torch.nn.functional.pad(x, flat)

kernel_name = 'parallel_sum__sliding_block_cached__glu_gated_swiglu__decode'

def setup_inputs():

    _w = (lambda a: (lambda t: t.to(torch.bfloat16) if t.is_floating_point() else t)(torch.as_tensor(a)))
    def _A_setup():
        B, Sq, D = 2, 1, 576
        Hq, Hkv, Sk, Dh = 32, 16, 32768, 128
        assert Hq % Hkv == 0, (Hq, Hkv)
        return {
            "x": _w((lambda *s: torch.randn(*s, dtype=torch.bfloat16) * 0.05)(B, Sq, D)),
            "k_cache": _w((lambda *s: torch.randn(*s, dtype=torch.bfloat16) * 1.6)(B, Hkv, Sk, Dh)),
            "v_cache": _w((lambda *s: torch.randn(*s, dtype=torch.bfloat16) * 0.8)(B, Hkv, Sk, Dh)),
            "wq": _w((lambda *s: torch.randn(*s, dtype=torch.bfloat16) * 1.6)(D, Hq * Dh) * (D ** -0.5)),
            "wo": _w((lambda *s: torch.randn(*s, dtype=torch.bfloat16) * 0.8)(Hq * Dh, D) * ((Hq * Dh) ** -0.5)),
        }
    _A_in = _A_setup()

    def _B_setup():
        B, S, D, F = 2, 1, 576, 4608
        return {
            "x": _w((lambda *s: torch.randn(*s, dtype=torch.bfloat16) * 0.05)(B, S, D)),
            "w1": _w((lambda *s: torch.randn(*s, dtype=torch.bfloat16) * 0.4)(D, F) * (2.0 / D) ** 0.5),
            "w3": _w((lambda *s: torch.randn(*s, dtype=torch.bfloat16) * 0.4)(D, F) * (2.0 / D) ** 0.5),
            "w2": _w((lambda *s: torch.randn(*s, dtype=torch.bfloat16) * 0.4)(F, D) * (2.0 / F) ** 0.5),
        }
    _B_in = _B_setup()

    return {
        "A_x": _A_in["x"],
        "A_k_cache": _A_in["k_cache"],
        "A_v_cache": _A_in["v_cache"],
        "A_wq": _A_in["wq"],
        "A_wo": _A_in["wo"],
        "B_x": _B_in["x"],
        "B_w1": _B_in["w1"],
        "B_w3": _B_in["w3"],
        "B_w2": _B_in["w2"],
    }

def reference(A_x, A_k_cache, A_v_cache, A_wq, A_wo, B_x, B_w1, B_w3, B_w2):
    def _A_ref(x, k_cache, v_cache, wq, wo):
        B, Sq, D = x.shape
        Hq, Dh = 32, 128
        Hkv, Sk = k_cache.shape[1], k_cache.shape[2]
        W = min(4096, max(256, Sk // 4))
        rep = Hq // Hkv
        q = (lambda x, *d: x.permute(*d))((x @ wq).reshape(B, Sq, Hq, Dh), 0, 2, 1, 3)
        k = (lambda x, n, axis: torch.repeat_interleave(x, n, dim=axis))(k_cache[:, :, Sk - W:, :], rep, axis=1)
        v = (lambda x, n, axis: torch.repeat_interleave(x, n, dim=axis))(v_cache[:, :, Sk - W:, :], rep, axis=1)
        scores = torch.einsum("bhqd,bhkd->bhqk", q, k) * (Dh ** -0.5)
        p = _softmax(scores, axis=-1)
        o = torch.einsum("bhqk,bhkd->bhqd", p, v)
        return (lambda x, *d: x.permute(*d))(o, 0, 2, 1, 3).reshape(B, Sq, Hq * Dh) @ wo

    def _B_ref(x, w1, w3, w2):
        gate = torch.einsum("bsd,df->bsf", x, w1)
        up = torch.einsum("bsd,df->bsf", x, w3)
        h = _silu(gate) * up
        out = torch.einsum("bsf,fd->bsd", h, w2)
        return out

    x = A_x
    xn = _layernorm(x, axis=-1)
    return x + _A_ref(xn, A_k_cache, A_v_cache, A_wq, A_wo) + _B_ref(xn, B_w1, B_w3, B_w2)
```

```python
NAME = 'parallel_sum__sliding_block_cached__glu_gated_swiglu__decode'
HEADER = open('cdna_kernels/' + NAME + '.s.ref').read().split('; Override launch geometry')[0]

class Asm:
    def __init__(self):
        self.l = []
        self.nlabel = 0
    def __call__(self, s=''):
        for line in s.split('\n'):
            self.l.append('    ' + line.strip() if line.strip() and not line.strip().endswith(':') else line.strip())
    def label(self, base='L'):
        self.nlabel += 1
        return f'{base}_{self.nlabel}'
    def text(self):
        return '\n'.join(self.l) + '\n'

def kernel_file(launches, kernels):
    s = HEADER
    if len(launches) == 1 and launches[0][0] == NAME + '_kernel':
        _, g, b, lds = launches[0]
        s += f'; @launch grid=({g},1,1) block=({b},1,1) lds={lds}\n'
    else:
        for lab, g, b, lds in launches:
            s += f'; @launch kernel={lab} grid=({g},1,1) block=({b},1,1) lds={lds}\n'
    s += '.amdgcn_target "amdgcn-amd-amdhsa--gfx950"\n.text\n'
    for lab, body, vg, sg, acc in kernels:
        s += f'.globl {lab}\n.p2align 8\n.type {lab},@function\n{lab}:\n{body}'
    s += '.section .rodata,"a"\n'
    for lab, body, vg, sg, acc in kernels:
        s += f'''.p2align 6
.amdhsa_kernel {lab}
  .amdhsa_next_free_vgpr {vg}
  .amdhsa_next_free_sgpr {sg}
  .amdhsa_accum_offset {acc}
  .amdhsa_group_segment_fixed_size 0
  .amdhsa_kernarg_size 96
  .amdhsa_user_sgpr_count 2
  .amdhsa_user_sgpr_kernarg_segment_ptr 1
  .amdhsa_system_sgpr_workgroup_id_x 1
.end_amdhsa_kernel
'''
    return s
```

```python
import re
TRANS = ('v_exp_f32', 'v_log_f32', 'v_rcp_f32', 'v_rsq_f32', 'v_sqrt_f32', 'v_sin_f32', 'v_cos_f32', 'v_rcp_iflag_f32')
def regs(tok):
    tok = tok.strip()
    tok = re.sub(r'^-', '', tok)
    m = re.match(r'^(?:abs\()?([vsa])(\d+)\)?$', tok)
    if m: return {(m.group(1), int(m.group(2)))}
    m = re.match(r'^([vsa])\[(\d+):(\d+)\]$', tok)
    if m: return {(m.group(1), i) for i in range(int(m.group(2)), int(m.group(3)) + 1)}
    if tok == 'vcc': return {('s', 'vcc')}
    if tok in ('vcc_lo', 'vcc_hi'): return {('s', 'vcc')}
    if tok == 'exec': return {('s', 'exec')}
    if tok == 'm0': return {('s', 'm0')}
    return set()
class I:
    pass
def parse(line):
    s = line.split(';')[0].strip()
    if not s or s.endswith(':') or s.startswith('.'):
        return None
    parts = s.split(None, 1)
    op = parts[0]
    rest = parts[1] if len(parts) > 1 else ''
    ops = [o.strip() for o in rest.split(',')]
    mods = ''
    if ops:
        sp = ops[-1].split(None, 1)
        if len(sp) > 1:
            ops[-1] = sp[0]; mods = sp[1]
    i = I(); i.op = op; i.ops = ops; i.mods = mods; i.text = s
    i.vd = set(); i.vs = set(); i.sd = set(); i.ss = set(); i.ws = 1
    i.kind = 'other'; i.trans = False; i.dpp = False; i.perm = False; i.rl = False; i.srcc = set(); i.wide = set(); i.ab = set()
    R = [regs(o) for o in ops]
    V = lambda S: {x for x in S if x[0] in 'va'}
    Sg = lambda S: {x for x in S if x[0] == 's'}
    if op == 's_nop':
        i.ws = int(ops[0], 0) + 1
    elif op.startswith('v_mfma'):
        i.kind = 'mfma'; i.vd = R[0]; i.ab = R[1] | R[2]; i.srcc = V(R[3]); i.vs = i.ab | i.srcc
        i.passes = 8 if '32x32' in op else 4
    elif op.startswith('v_'):
        i.kind = 'valu'
        base = re.sub(r'_(e32|e64|dpp|sdwa)$', '', op)
        i.trans = base in TRANS
        i.dpp = op.endswith('_dpp') or 'quad_perm' in s or 'row_' in s
        if base.startswith('v_cmp'):
            i.sd = R[0]; src = R[1:]
            if base.startswith('v_cmpx'): i.sd = i.sd | {('s', 'exec')}
        elif base in ('v_readfirstlane_b32', 'v_readlane_b32'):
            i.sd = R[0]; src = R[1:]; i.rl = True
        elif base.startswith('v_permlane'):
            i.vd = R[0] | R[1]; src = R; i.perm = True
        elif base in ('v_add_co_u32', 'v_sub_co_u32', 'v_addc_co_u32', 'v_subb_co_u32'):
            i.vd = R[0]; i.sd = R[1]; src = R[2:]
        else:
            i.vd = R[0]; src = R[1:]
            if base in ('v_fmac_f32', 'v_dot2c_f32_bf16', 'v_writelane_b32') or i.dpp: src = R
        for r in src:
            i.vs |= V(r); i.ss |= Sg(r)
        if base == 'v_cndmask_b32' and len(ops) == 3: i.ss |= {('s', 'vcc')}
    elif op.startswith(('global_', 'buffer_', 'flat_')):
        i.kind = 'vmem'
        if 'load' in op and 'lds' not in op and 'lds' not in mods.split():
            i.vd = R[0]; src = R[1:]
        elif 'atomic' in op and 'sc0' in mods.split():
            i.vd = R[0]; src = R[1:]
        else:
            src = R
        for r in src:
            i.vs |= V(r); i.ss |= Sg(r)
        if 'store' in op and ('x4' in op or 'x3' in op):
            i.wide = R[1] if op.startswith('global_') else R[0]
    elif op.startswith('ds_'):
        i.kind = 'ds'
        if 'read' in op or 'rtn' in op or 'permute' in op or 'swizzle' in op:
            i.vd = R[0]; src = R[1:]
        else:
            src = R
        for r in src: i.vs |= V(r)
    elif op.startswith('s_'):
        i.kind = 'salu'
        if not op.startswith(('s_cmp', 's_waitcnt', 's_barrier', 's_branch', 's_cbranch', 's_endpgm', 's_setprio', 's_sleep', 's_bitcmp')):
            i.sd = R[0] if R else set()
            for r in R[1:]: i.ss |= Sg(r)
        else:
            for r in R: i.ss |= Sg(r)
    return i
def need(p, c):
    n = 0
    if p.kind == 'valu':
        if c.kind == 'mfma' and p.vd & c.vs: n = max(n, 2)
        if c.kind == 'valu':
            if c.dpp and p.vd & c.vs: n = max(n, 2)
            if c.perm and p.vd & c.vs: n = max(n, 2)
            if c.rl and p.vd & c.vs: n = max(n, 1)
            if p.trans and not c.trans and p.vd & c.vs: n = max(n, 1)
            if p.sd & c.ss: n = max(n, 4 if c.rl or c.op.startswith('v_writelane') else 2)
            if ('s', 'exec') in p.sd: n = max(n, 5 if c.dpp else 4 if (c.rl or c.perm) else 0)
        if c.kind == 'mfma' and ('s', 'exec') in p.sd: n = max(n, 4)
        if c.kind == 'mfma' and p.trans and p.vd & c.vs: n = max(n, 2)
        if c.kind == 'vmem' and p.sd & c.ss: n = max(n, 5)
        if c.kind in ('vmem', 'ds') and p.trans and p.vd & c.vs: n = max(n, 1)
        if c.kind == 'salu' and p.sd & c.ss: n = max(n, 1)
    if p.kind == 'mfma':
        big = 8 if p.passes == 4 else 12
        if c.kind == 'mfma':
            if p.vd & c.ab: n = max(n, big)
            if p.vd & c.srcc and p.vd != c.srcc: n = max(n, big - 2)
            if p.vd & c.vd and p.vd != c.srcc: n = max(n, big - 2)
        elif c.kind == 'valu':
            if p.vd & (c.vs | c.vd): n = max(n, big)
            if p.srcc & c.vd: n = max(n, 3 if p.passes == 4 else 7)
        elif c.kind in ('vmem', 'ds'):
            if p.vd & (c.vs | c.vd): n = max(n, big)
            if p.srcc & c.vd: n = max(n, 3 if p.passes == 4 else 7)
    if p.kind == 'vmem' and p.wide:
        if c.kind in ('valu', 'mfma') and p.wide & c.vd: n = max(n, 2)
        elif c.kind in ('vmem', 'ds') and p.wide & c.vd: n = max(n, 1)
    if p.kind == 'ds' and p.op in ('ds_write_b128', 'ds_write_b96') and c.kind in ('valu', 'mfma') and p.vs & c.vd:
        n = max(n, 2)
    if p.kind == 'salu' and ('s', 'm0') in p.sd and c.kind == 'vmem' and ('lds' in c.op or 'lds' in c.mods.split()): n = max(n, 1)
    if p.kind == 'salu' and ('s', 'exec') in p.sd and c.kind == 'valu' and (c.dpp or c.perm): n = max(n, 1)
    return n
def fix(lines):
    out = []; hist = []; added = 0
    for line in lines:
        i = parse(line)
        if i is None:
            out.append(line); continue
        req = 0; dist = 0
        for p in reversed(hist[-24:]):
            k = need(p, i)
            if k - dist > req: req = k - dist
            dist += p.ws
            if dist >= 14: break
        if req > 0:
            nop = parse(f's_nop {req - 1}')
            out.append(f'    s_nop {req - 1}'); hist.append(nop); added += 1
        out.append(line); hist.append(i)
        if i.op in ('s_endpgm', 's_branch', 's_setpc_b64'):
            hist = []
    return out, added
```

```python
import sys
from asmlib import *
import hazard

E_OFF, H2M, S1P, H2D, H3 = 0x0, 0x1000, 0x10000, 0x50000, 0xA0000
STAMP = 0x3000000
L_XD1 = 0
L_Q = 4608
L_XD2 = 5120
L_CNT = 5632
L_ML = 5696
L_O = 6144
LDS_BYTES = 6144 + 8192
SPIN = 30000

def gen(stamps=False, ntKV='nt', ntW='nt'):
    a = Asm()
    st_used = {}
    def stamp(slot):
        if stamps:
            a(f's_memrealtime s[{60+2*slot}:{61+2*slot}]')
    def dump(slots):
        if not stamps: return
        a('s_waitcnt lgkmcnt(0)')
        a('s_mov_b64 exec, 1')
        if stamps == 'dbg':
            a('v_mov_b32 v1, 0')
            for s_ in slots:
                if s_ == 7:
                    a('s_cmp_lt_u32 s2, 128')
                    a('s_cselect_b32 s74, 0, s74')
                a(f'v_mov_b32 v2, s{60+2*s_}')
                if s_ == 0:
                    a('global_atomic_umax v1, v2, s[36:37] offset:52')
                    a('s_not_b32 s60, s60')
                    a('v_mov_b32 v3, s60')
                    a('global_atomic_umax v1, v3, s[36:37]')
                else:
                    a(f'global_atomic_umax v1, v2, s[36:37] offset:{4*s_}')
            return
        a(f's_lshl_b32 s58, s2, 6')
        a(f's_add_u32 s58, s58, {STAMP}')
        a('v_mov_b32 v1, s58')
        for s_ in slots:
            a(f'v_mov_b32 v2, s{60+2*s_}')
            a(f'global_store_dword v1, v2, s[38:39] offset:{4*s_}')
    X, K, V, WQ, WO, W1, W3, W2, OUT, WS = 16, 18, 20, 22, 24, 28, 30, 32, 34, 38
    sp = lambda r: f's[{r}:{r+1}]'
    vr = lambda r, n=4: f'v[{r}:{r+n-1}]'
    M0 = 160
    sT = 40
    def masks():
        a('v_and_b32 v6, 1, v0')
        a('v_lshlrev_b32 v6, 4, v6')
        a('v_mov_b32 v7, 0xffff')
        a('v_lshlrev_b32 v7, v6, v7')
        a('v_bfe_u32 v6, v0, 1, 2')
        for k in range(4):
            a(f'v_cmp_eq_u32 vcc, {k}, v6')
            a(f'v_cndmask_b32 v{M0+k}, 0, v7, vcc')
    def tag_setup(vT):
        a(f's_add_u32 s{sT}, s{sT}, 1')
        a('s_movk_i32 s41, 0x3ff')
        a(f's_and_b32 s42, s{sT}, s41')
        a(f'v_mov_b32 v{vT}, s42')
    def tagify(r, n, vT):
        for k in range(n):
            a(f'v_bfi_b32 v{r+k}, s41, v{vT}, v{r+k}')
    def tagcheck(regs, vT, t0, t1):
        assert len(regs) % 2 == 0
        first = True
        for k in range(0, len(regs), 2):
            d = t0 if first else t1
            a(f'v_bitop3_b32 v{d}, v{regs[k]}, v{regs[k+1]}, v{vT} bitop3:0x7e')
            if not first:
                a(f'v_or_b32 v{t0}, v{t0}, v{t1}')
            first = False
        a(f'v_and_b32 v{t0}, s41, v{t0}')
        a(f'v_cmp_ne_u32 vcc, 0, v{t0}')
    def xor16(op, r, t):
        a(f'v_mov_b32 v{t}, v{r}')
        a(f'v_permlane16_swap_b32 v{r}, v{t}')
        a(f'{op} v{r}, v{r}, v{t}')
    def xor32(op, r, t):
        a(f'v_mov_b32 v{t}, v{r}')
        a(f'v_permlane32_swap_b32 v{r}, v{t}')
        a(f'{op} v{r}, v{r}, v{t}')
    def dpp(op, d, s0, s1, ctl):
        a(f'{op}_dpp v{d}, v{s0}, v{s1} {ctl} row_mask:0xf bank_mask:0xf')
    def rnd2(r0, r1, t):
        a(f'v_cvt_pk_bf16_f32 v{t}, v{r0}, v{r1}')
        a(f'v_lshlrev_b32 v{r0}, 16, v{t}')
        a(f'v_and_b32 v{r1}, s43, v{t}')

    a('s_cmp_ge_u32 s2, 256')
    a('s_cbranch_scc1 L_end')
    stamp(0)
    a('s_load_dwordx16 s[16:31], s[0:1], 0')
    a('s_load_dwordx8 s[32:39], s[0:1], 64')
    a('v_lshrrev_b32 v1, 6, v0')
    a('v_and_b32 v0, 63, v0')
    a('v_readfirstlane_b32 s3, v1')
    a('s_mov_b32 s43, 0xffff0000')
    a('v_and_b32 v6, 15, v0')
    a('v_lshrrev_b32 v7, 4, v0')
    a('s_cmp_lt_u32 s3, 4')
    a('s_cbranch_scc1 L_aux')
    KR, VR, QR, DT, OA = 8, 72, 136, 144, 164
    a('v_lshrrev_b32 v2, 1, v6')
    a('v_lshlrev_b32 v2, 8, v2')
    a('v_and_b32 v3, 1, v6')
    a('v_lshl_add_u32 v2, v3, 6, v2')
    a('v_lshl_add_u32 v2, v7, 4, v2')
    a('v_lshlrev_b32 v4, 4, v6')
    a('v_lshl_add_u32 v4, v7, 9, v4')
    a('v_add_u32 v2, 4096, v2')
    a('v_add_u32 v3, 8192, v2')
    a('v_add_u32 v4, 4096, v4')
    a('v_add_u32 v5, 8192, v4')
    a('s_lshr_b32 s4, s2, 3')
    a('s_lshl_b32 s4, s4, 23')
    a('s_and_b32 s5, s2, 7')
    a('s_lshl_b32 s5, s5, 17')
    a('s_add_u32 s4, s4, s5')
    a('s_lshl_b32 s5, s3, 14')
    a('s_add_u32 s4, s4, s5')
    a(f's_add_u32 s4, s4, {7340032 - 4*16384}')
    a('s_waitcnt lgkmcnt(0)')
    a(f's_add_u32 s{K}, s{K}, s4')
    a(f's_addc_u32 s{K+1}, s{K+1}, 0')
    a(f's_add_u32 s{V}, s{V}, s4')
    a(f's_addc_u32 s{V+1}, s{V+1}, 0')
    for t in range(8):
        for jj in range(2):
            off = t * 2048 + jj * 128
            vv, o = (2, off - 4096) if off < 8192 else (3, off - 12288)
            a(f'global_load_dwordx4 {vr(KR + 8*t + 4*jj)}, v{vv}, {sp(K)} offset:{o} {ntKV}')
    for t in range(8):
        for u in range(2):
            off = t * 2048 + u * 256
            vv, o = (4, off - 4096) if off < 8192 else (5, off - 12288)
            a(f'global_load_dwordx4 {vr(VR + 8*t + 4*u)}, v{vv}, {sp(V)} offset:{o} {ntKV}')
    a(f's_load_dword s{sT}, {sp(WS)}, {E_OFF}')
    masks()
    a('v_bfe_u32 v2, v0, 3, 1')
    a('v_lshlrev_b32 v2, 8, v2')
    a('v_and_b32 v3, 1, v0')
    a('v_lshl_add_u32 v2, v3, 6, v2')
    a('v_lshrrev_b32 v3, 4, v0')
    a('v_lshl_add_u32 v2, v3, 4, v2')
    a('s_mov_b32 vcc_lo, 0xaaaaaaaa')
    a('s_mov_b32 vcc_hi, 0xaaaaaaaa')
    a('s_mov_b32 s44, 0x3db504f3')
    a('s_mov_b32 s45, 0x3fb8aa3b')
    a('s_barrier')
    a('s_setprio 2')
    a(f'ds_read_b128 {vr(QR)}, v2 offset:{L_Q}')
    a(f'ds_read_b128 {vr(QR+4)}, v2 offset:{L_Q+128}')
    a('s_waitcnt lgkmcnt(0)')
    def extract(t):
        d = DT + 4 * (t % 4)
        a(f'v_cndmask_b32 v{d}, v{d}, v{d+1}, vcc')
        a(f'v_cndmask_b32 v{d+2}, v{d+2}, v{d+3}, vcc')
        return d
    def extract2(t):
        d = DT + 4 * (t % 4)
        dpp('v_add_f32', KR + 8*t, d, d, 'quad_perm:[1,0,3,2]')
        dpp('v_add_f32', KR + 8*t + 1, d + 2, d + 2, 'quad_perm:[1,0,3,2]')
    for t in range(8 + 3):
        if t < 8:
            d = DT + 4 * (t % 4)
            a(f's_waitcnt vmcnt({30 - 2*t})')
            a(f'v_mfma_f32_16x16x32_bf16 {vr(d)}, {vr(KR+8*t)}, {vr(QR)}, 0')
            a(f'v_mfma_f32_16x16x32_bf16 {vr(d)}, {vr(KR+8*t+4)}, {vr(QR+4)}, {vr(d)}')
        if 3 <= t: extract2(t - 3)
        if 2 <= t < 10: extract(t - 2)
    S = lambda s: KR + 8 * (s >> 1) + (s & 1)
    for t in range(8):
        rnd2(S(2*t), S(2*t+1), QR + (t & 1))
        a(f'v_mul_f32 v{S(2*t)}, s44, v{S(2*t)}')
        a(f'v_mul_f32 v{S(2*t+1)}, s44, v{S(2*t+1)}')
        rnd2(S(2*t), S(2*t+1), QR + 2 + (t & 1))
    a(f'v_max3_f32 v6, v{S(0)}, v{S(1)}, v{S(2)}')
    for s in range(3, 15, 2):
        a(f'v_max3_f32 v6, v6, v{S(s)}, v{S(s+1)}')
    a(f'v_max_f32 v6, v6, v{S(15)}')
    xor16('v_max_f32', 6, 7)
    xor32('v_max_f32', 6, 7)
    a('v_mul_f32 v6, s45, v6')
    for s in range(16):
        a(f'v_fma_f32 v{S(s)}, v{S(s)}, s45, -v6')
    for s in range(16):
        a(f'v_exp_f32 v{S(s)}, v{S(s)}')
    a(f'v_add_f32 v7, v{S(0)}, v{S(1)}')
    for s in range(2, 16):
        a(f'v_add_f32 v7, v7, v{S(s)}')
    for t in range(8):
        t0, t1 = QR + 2 * (t & 1), QR + 2 * (t & 1) + 1
        a(f'v_cvt_pk_bf16_f32 v{t0}, v{S(2*t)}, v{S(2*t)}')
        a(f'v_cvt_pk_bf16_f32 v{t1}, v{S(2*t+1)}, v{S(2*t+1)}')
        for k in range(4):
            a(f'v_and_b32 v{KR+8*t+k}, v{t0}, v{M0+k}')
        for k in range(4):
            a(f'v_and_b32 v{KR+8*t+4+k}, v{t1}, v{M0+k}')
    xor16('v_add_f32', 7, 5)
    xor32('v_add_f32', 7, 5)
    a('s_sub_u32 s4, s3, 4')
    a('s_lshl_b32 s5, s4, 10')
    a('v_lshl_add_u32 v2, v0, 4, s5')
    a('s_lshl_b32 s5, s4, 2')
    a('v_lshl_add_u32 v3, v0, 3, s5')
    a('v_mov_b32 v4, 1')
    a('v_mov_b32 v5, 0')
    for s in range(16):
        a(f's_waitcnt vmcnt({15 - s})')
        c = '0' if s == 0 else vr(OA)
        a(f'v_mfma_f32_16x16x32_bf16 {vr(OA)}, {vr(KR + 4*s)}, {vr(VR + 4*s)}, {c}')
    a('s_mov_b64 exec, 0x101')
    a(f'ds_write2_b32 v3, v6, v7 offset0:{L_ML//4 % 256} offset1:{L_ML//4 % 256 + 8}' if False else f'ds_write_b32 v3, v6 offset:{L_ML}')
    a(f'ds_write_b32 v3, v7 offset:{L_ML+32}')
    a('s_mov_b64 exec, -1')
    a(f'ds_write_b128 v2, {vr(OA)} offset:{L_O}')
    a('s_mov_b64 exec, 1')
    a(f'ds_add_rtn_u32 v4, v5, v4 offset:{L_CNT}')
    a('s_mov_b64 exec, -1')
    a('s_waitcnt lgkmcnt(0)')
    a('v_readfirstlane_b32 s4, v4')
    a('s_cmp_lg_u32 s4, 7')
    a('s_cbranch_scc1 L_end')
    stamp(5)
    a('s_setprio 3')
    a('v_lshrrev_b32 v2, 5, v0')
    a('v_lshlrev_b32 v2, 6, v2')
    a('v_lshlrev_b32 v3, 4, v0')
    a(f'ds_read_b128 {vr(8)}, v2 offset:{L_ML}')
    a(f'ds_read_b128 {vr(12)}, v2 offset:{L_ML+16}')
    a(f'ds_read_b128 {vr(16)}, v2 offset:{L_ML+32}')
    a(f'ds_read_b128 {vr(20)}, v2 offset:{L_ML+48}')
    for w in range(8):
        a(f'ds_read_b128 {vr(24+4*w)}, v3 offset:{L_O + 1024*w}')
    tag_setup(60)
    a('s_lshr_b32 s4, s2, 3')
    a('s_and_b32 s5, s4, 15')
    a('s_lshr_b32 s4, s4, 4')
    a('s_lshl_b32 s4, s4, 3')
    a('s_and_b32 s6, s2, 7')
    a('s_add_u32 s4, s4, s6')
    a('s_lshl_b32 s6, s5, 14')
    a('s_lshl_b32 s7, s4, 7')
    a('s_add_u32 s6, s6, s7')
    a(f's_add_u32 s6, s6, {H2D}')
    a('s_lshl_b32 s7, s5, 11')
    a('s_lshl_b32 s8, s4, 4')
    a('s_add_u32 s7, s7, s8')
    a(f's_add_u32 s7, s7, {H2M}')
    a('v_lshrrev_b32 v4, 5, v0')
    a('v_bfe_u32 v5, v0, 2, 2')
    a('v_lshl_add_u32 v4, v4, 2, v5')
    a('v_lshl_add_u32 v62, v4, 8, s7')
    a('v_lshl_add_u32 v61, v4, 11, s6')
    a('v_and_b32 v5, 3, v0')
    a('v_lshl_add_u32 v61, v5, 5, v61')
    a('v_bfe_u32 v5, v0, 4, 1')
    a('v_lshl_add_u32 v61, v5, 4, v61')
    a('s_waitcnt lgkmcnt(8)')
    a('v_max3_f32 v64, v8, v9, v10')
    a('v_max3_f32 v64, v64, v11, v12')
    a('v_max3_f32 v64, v64, v13, v14')
    a('v_max_f32 v64, v64, v15')
    tagify(64, 1, 60)
    for w in range(8):
        a(f'v_sub_f32 v{8+w}, v{8+w}, v64')
    for w in range(8):
        a(f'v_exp_f32 v{8+w}, v{8+w}')
    a('v_mul_f32 v65, v8, v16')
    for w in range(1, 8):
        a(f'v_fmac_f32 v65, v{8+w}, v{16+w}')
    for w in range(8):
        a(f's_waitcnt lgkmcnt({7-w})')
        for r in range(4):
            if w == 0: a(f'v_mul_f32 v{68+r}, v8, v{24+r}')
            else: a(f'v_fmac_f32 v{68+r}, v{8+w}, v{24+4*w+r}')
    tagify(68, 4, 60)
    tagify(65, 1, 60)
    a(f'global_store_dwordx4 v61, {vr(68)}, {sp(WS)} sc1')
    a('v_mov_b32 v66, v64')
    a('v_mov_b32 v67, v65')
    a('s_mov_b32 exec_lo, 0x1111')
    a('s_mov_b32 exec_hi, 0x1111')
    a(f'global_store_dwordx4 v62, {vr(64)}, {sp(WS)} sc1')
    stamp(6)
    dump([5, 6])
    a('s_endpgm')

    a('L_aux:')
    a('s_setprio 3')
    masks_done = False
    a('s_cmp_lg_u32 s3, 0')
    a('s_cbranch_scc1 L_auxB1')
    RG, XV, AT, DA = 8, 104, 128, 144
    a('s_cmp_ge_u32 s2, 208')
    a('s_cbranch_scc1 L_nos1')
    a('s_and_b32 s5, s2, 1')
    a('s_lshr_b32 s4, s2, 1')
    a('s_lshl_b32 s7, s4, 7')
    a('s_waitcnt lgkmcnt(0)')
    a('s_movk_i32 s6, 9216')
    a('s_cmp_lt_u32 s4, 32')
    a('s_cselect_b32 s6, 8192, s6')
    a(f's_cselect_b32 s8, s{WQ}, s{W1}')
    a(f's_cselect_b32 s9, s{WQ+1}, s{W1+1}')
    a('s_cselect_b32 s12, 0, 32')
    a('s_cmp_lt_u32 s4, 68')
    a(f's_cselect_b32 s8, s8, s{W3}')
    a(f's_cselect_b32 s9, s9, s{W3+1}')
    a('s_cselect_b32 s12, s12, 0x44')
    a('s_sub_u32 s4, s4, s12')
    a('s_lshl_b32 s4, s4, 8')
    a('s_mul_i32 s10, s6, 288')
    a('s_mul_i32 s12, s10, s5')
    a('s_add_u32 s4, s4, s12')
    a('s_add_u32 s8, s8, s4')
    a('s_addc_u32 s9, s9, 0')
    a('s_sub_u32 s10, s10, 4096')
    a('s_mov_b32 s11, 0x20000')
    a('s_lshl_b32 s13, s6, 2')
    a('v_mul_u32_u24 v2, s13, v7')
    a('v_lshl_add_u32 v2, v6, 4, v2')
    a('s_mul_i32 s13, s6, 13')
    a('s_mov_b32 s12, 0')
    a('v_lshrrev_b32 v3, 5, v0')
    a('v_mul_u32_u24 v3, 1152, v3')
    a('v_and_b32 v4, 31, v0')
    a('v_mul_u32_u24 v4, 36, v4')
    a('v_add_u32 v3, v3, v4')
    XR = 104
    a(f'global_load_dwordx3 {vr(XR,3)}, v3, {sp(X)}')
    a(f'global_load_dwordx3 {vr(XR+4,3)}, v3, {sp(X)} offset:12')
    a(f'global_load_dwordx3 {vr(XR+8,3)}, v3, {sp(X)} offset:24')
    raw = [XR, XR+1, XR+2, XR+4, XR+5, XR+6, XR+8, XR+9, XR+10]
    def s1load(k):
        a(f'buffer_load_dwordx4 {vr(RG+4*k)}, v2, s[8:11], s12 offen {ntW}')
        a(f's_add_u32 s12, s12, s{13 if k % 4 == 3 else 6}')
    for k in range(24): s1load(k)
    a(f's_load_dword s{sT}, {sp(WS)}, {E_OFF}')
    masks()
    a('v_lshlrev_b32 v3, 1, v3')
    a('s_waitcnt vmcnt(24)')
    U = 116
    for k in range(9):
        a(f'v_lshlrev_b32 v{U+2*k}, 16, v{raw[k]}')
        a(f'v_and_b32 v{U+2*k+1}, s43, v{raw[k]}')
    def red32(r, t):
        dpp('v_add_f32', r, r, r, 'quad_perm:[1,0,3,2]')
        dpp('v_add_f32', r, r, r, 'quad_perm:[2,3,0,1]')
        dpp('v_add_f32', r, r, r, 'row_half_mirror')
        dpp('v_add_f32', r, r, r, 'row_mirror')
        xor16('v_add_f32', r, t)
    a(f'v_add_f32 v134, v{U}, v{U+1}')
    for k in range(2, 18): a(f'v_add_f32 v134, v134, v{U+k}')
    red32(134, 135)
    a('s_mov_b32 s14, 0x3ae38e39')
    a('v_mul_f32 v134, s14, v134')
    a(f'v_sub_f32 v135, v{U}, v134')
    a('v_mul_f32 v136, v135, v135')
    for k in range(1, 18):
        a(f'v_sub_f32 v135, v{U+k}, v134')
        a('v_fmac_f32 v136, v135, v135')
    red32(136, 135)
    a('v_mul_f32 v136, s14, v136')
    rnd2(134, 136, 135)
    a('v_add_f32 v136, 0x3727c5ac, v136')
    rnd2(136, 137, 135)
    a('v_sqrt_f32 v136, v136')
    rnd2(136, 137, 135)
    a('v_rcp_f32 v136, v136')
    for k in range(0, 18, 2):
        a(f'v_sub_f32 v{U+k}, v{U+k}, v134')
        a(f'v_sub_f32 v{U+k+1}, v{U+k+1}, v134')
        rnd2(U + k, U + k + 1, 135)
        a(f'v_mul_f32 v{U+k}, v{U+k}, v136')
        a(f'v_mul_f32 v{U+k+1}, v{U+k+1}, v136')
        a(f'v_cvt_pk_bf16_f32 v{U+k}, v{U+k}, v{U+k}')
        a(f'v_cvt_pk_bf16_f32 v{U+k+1}, v{U+k+1}, v{U+k+1}')
        a(f'ds_write_b64 v3, {vr(U+k,2)} offset:{L_XD1 + 4*k}')
    stamp(1)
    a('v_bfe_u32 v3, v0, 3, 1')
    a('v_mul_u32_u24 v3, 2304, v3')
    a('v_lshrrev_b32 v4, 4, v0')
    a('v_lshl_add_u32 v3, v4, 4, v3')
    a('s_mul_i32 s14, s5, 1152')
    a('v_add_u32 v3, s14, v3')
    for k in range(4): a(f'v_mov_b32 v{DA+k}, 0')
    a('s_mov_b32 s14, 3')
    a('L_s1loop:')
    for T in range(6):
        a(f'ds_read_b128 {vr(XV+4*T)}, v3 offset:{L_XD1 + 64*T}')
    a('v_add_u32 v3, 384, v3')
    a('s_waitcnt lgkmcnt(0)')
    def s1and(k):
        for q in range(4):
            a(f'v_and_b32 v{AT + 4*(k&1) + q}, v{XV+k}, v{M0+q}')
    s1and(0)
    for k in range(24):
        if k < 23: s1and(k + 1)
        a('s_waitcnt vmcnt(23)')
        a(f'v_mfma_f32_16x16x32_bf16 {vr(DA)}, {vr(AT+4*(k&1))}, {vr(RG+4*k)}, {vr(DA)}')
        s1load(k)
    a('s_sub_u32 s14, s14, 1')
    a('s_cmp_lg_u32 s14, 0')
    a('s_cbranch_scc1 L_s1loop')
    stamp(2)
    tag_setup(150)
    a('s_mul_i32 s4, s5, 26624')
    a('s_add_u32 s4, s4, s7')
    a('s_lshl_b32 s4, s4, 2')
    a(f's_add_u32 s4, s4, {S1P}')
    a('v_lshrrev_b32 v3, 5, v0')
    a('v_mul_u32_u24 v3, 53248, v3')
    a('v_and_b32 v4, 15, v0')
    a('v_lshl_add_u32 v3, v4, 5, v3')
    a('v_bfe_u32 v4, v0, 4, 1')
    a('v_lshl_add_u32 v3, v4, 4, v3')
    a('v_add_u32 v3, s4, v3')
    tagify(DA, 4, 150)
    a(f'global_store_dwordx4 v3, {vr(DA)}, {sp(WS)} sc1')
    a('s_branch L_qpoll')
    a('L_nos1:')
    a('s_waitcnt lgkmcnt(0)')
    a(f's_load_dword s{sT}, {sp(WS)}, {E_OFF}')
    masks()
    a('s_waitcnt lgkmcnt(0)')
    tag_setup(150)
    stamp(1); stamp(2)
    a('L_qpoll:')
    a('v_mov_b32 v8, 0')
    a('v_mov_b32 v9, 0')
    a('v_lshlrev_b32 v3, 3, v0')
    a(f'ds_write_b64 v3, v[8:9] offset:{L_XD2}')
    a(f'ds_write_b32 v8, v8 offset:{L_CNT}')
    a('s_lshr_b32 s4, s2, 3')
    a('s_lshr_b32 s5, s4, 4')
    a('s_and_b32 s4, s4, 15')
    a('s_mul_i32 s5, s5, 53248')
    a('s_lshl_b32 s4, s4, 10')
    a('s_add_u32 s4, s4, s5')
    a(f's_add_u32 s4, s4, {S1P}')
    a('v_lshl_add_u32 v4, v0, 4, s4')
    a('v_add_u32 v5, 106496, v4')
    a(f's_mov_b32 s14, {SPIN}')
    a('L_qloop:')
    a(f'global_load_dwordx4 {vr(8)}, v4, {sp(WS)} sc1')
    a(f'global_load_dwordx4 {vr(12)}, v5, {sp(WS)} sc1')
    a('s_sub_u32 s14, s14, 1')
    a('s_cbranch_scc1 L_qok')
    a('s_waitcnt vmcnt(0)')
    tagcheck(list(range(8, 16)), 150, 16, 17)
    a('s_cbranch_vccnz L_qloop')
    a('L_qok:')
    a('s_waitcnt vmcnt(0)')
    for r in range(4): a(f'v_add_f32 v{8+r}, v{8+r}, v{12+r}')
    a('v_cvt_pk_bf16_f32 v8, v8, v9')
    a('v_cvt_pk_bf16_f32 v9, v10, v11')
    a(f'ds_write_b64 v3, v[8:9] offset:{L_Q}')
    stamp(3)
    a('s_branch L_B1')
    a('L_auxB1:')
    a('s_waitcnt lgkmcnt(0)')
    a(f's_load_dword s{sT}, {sp(WS)}, {E_OFF}')
    masks()
    a('s_waitcnt lgkmcnt(0)')
    tag_setup(150)
    a('L_B1:')
    a('s_mov_b32 s10, 41472')
    a('s_cmp_ge_u32 s2, 128')
    a(f's_cselect_b32 s8, s{WO}, s{W2}')
    a(f's_cselect_b32 s9, s{WO+1}, s{W2+1}')
    a('s_cselect_b32 s10, 36864, s10')
    a('s_and_b32 s4, s2, 127')
    a('s_mul_i32 s4, s4, s10')
    a('s_add_u32 s8, s8, s4')
    a('s_addc_u32 s9, s9, 0')
    a('s_mov_b32 s11, 0x20000')
    a('s_movk_i32 s12, 18432')
    a('s_mov_b32 s13, 36864')
    a('v_and_b32 v6, 15, v0')
    a('v_lshrrev_b32 v7, 4, v0')
    a('s_lshl_b32 s4, s3, 8')
    a('v_lshl_add_u32 v3, v6, 4, s4')
    a('v_mul_u32_u24 v2, 1152, v7')
    a('v_add_u32 v3, v3, v2')
    a('v_mul_u32_u24 v2, 3456, v7')
    a('v_add_u32 v2, v2, v3')
    a('s_waitcnt lgkmcnt(0)')
    a('s_barrier')
    stamp(4)
    def finload(base, va, vb):
        for t in range(8):
            a(f'buffer_load_dwordx4 {vr(base+4*t)}, v{va}, s[8:11], {"0" if t < 4 else "s12"} offen offset:{1152*(t&3)} {ntW}')
        a(f'buffer_load_dwordx4 {vr(base+32)}, v{vb}, s[8:11], s13 offen {ntW}')
    a('s_cmp_eq_u32 s3, 1')
    a('s_cbranch_scc1 L_aux1')
    finload(8, 2, 3)
    a('s_cmp_lg_u32 s3, 0')
    a('s_cbranch_scc1 L_B3')
    a('s_cmp_lt_u32 s2, 128')
    a('s_cbranch_scc1 L_B3')
    a('s_and_b32 s4, s2, 127')
    a('s_lshl_b32 s5, s4, 11')
    a(f's_add_u32 s5, s5, {H2D}')
    a('s_lshl_b32 s4, s4, 8')
    a(f's_add_u32 s4, s4, {H2M}')
    a('v_lshrrev_b32 v6, 5, v0')
    a('v_and_b32 v7, 31, v0')
    a('v_lshlrev_b32 v4, 10, v6')
    a('v_lshl_add_u32 v4, v7, 4, v4')
    a('v_add_u32 v4, s5, v4')
    a('v_lshlrev_b32 v5, 7, v6')
    a('v_lshrrev_b32 v7, 3, v7')
    a('v_lshl_add_u32 v5, v7, 4, v5')
    a('v_add_u32 v5, s4, v5')
    a('v_mul_u32_u24 v100, 192, v6')
    a('v_and_b32 v7, 7, v0')
    a('v_lshl_add_u32 v100, v7, 4, v100')
    a('v_bfe_u32 v7, v0, 4, 1')
    a('v_lshl_add_u32 v100, v7, 3, v100')
    a(f's_mov_b32 s14, {SPIN}')
    a('L_h2loop:')
    a(f'global_load_dwordx4 {vr(80)}, v4, {sp(WS)} sc1')
    a(f'global_load_dwordx4 {vr(84)}, v4, {sp(WS)} offset:512 sc1')
    a(f'global_load_dwordx4 {vr(88)}, v5, {sp(WS)} sc1')
    a(f'global_load_dwordx4 {vr(92)}, v5, {sp(WS)} offset:64 sc1')
    a('s_sub_u32 s14, s14, 1')
    a('s_cbranch_scc1 L_h2ok')
    a('s_waitcnt vmcnt(0)')
    tagcheck(list(range(80, 96)), 150, 96, 97)
    a('s_cbranch_vccnz L_h2loop')
    a('L_h2ok:')
    a('s_waitcnt vmcnt(0)')
    a('v_max_f32 v96, v88, v92')
    dpp('v_max_f32', 96, 96, 96, 'row_ror:8')
    xor16('v_max_f32', 96, 97)
    a('v_sub_f32 v88, v88, v96')
    a('v_sub_f32 v92, v92, v96')
    a('v_exp_f32 v88, v88')
    a('v_exp_f32 v92, v92')
    a('v_mul_f32 v96, v88, v89')
    a('v_fmac_f32 v96, v92, v93')
    for r in range(4): a(f'v_mul_f32 v{80+r}, v88, v{80+r}')
    for r in range(4): a(f'v_fmac_f32 v{80+r}, v92, v{84+r}')
    dpp('v_add_f32', 96, 96, 96, 'row_ror:8')
    a('v_permlane16_swap_b32 v80, v82')
    a('v_permlane16_swap_b32 v81, v83')
    xor16('v_add_f32', 96, 97)
    a('v_add_f32 v80, v80, v82')
    a('v_add_f32 v81, v81, v83')
    a('v_rcp_f32 v96, v96')
    dpp('v_add_f32', 80, 80, 80, 'row_ror:8')
    dpp('v_add_f32', 81, 81, 81, 'row_ror:8')
    a('v_mul_f32 v80, v80, v96')
    a('v_mul_f32 v81, v81, v96')
    a('v_cvt_pk_bf16_f32 v80, v80, v80')
    a('v_cvt_pk_bf16_f32 v81, v81, v81')
    a(f'ds_write_b64 v100, v[80:81] offset:{L_XD2}')
    stamp(7)
    a('s_branch L_B3')
    a('L_aux1:')
    a('v_add_u32 v4, 768, v2')
    a('v_add_u32 v5, 768, v3')
    a('v_cmp_gt_u32 vcc, 8, v6')
    a('v_mov_b32 v101, 0x40000000')
    a('v_cndmask_b32 v4, v101, v4, vcc')
    a('v_cndmask_b32 v5, v101, v5, vcc')
    a('s_cmp_ge_u32 s2, 128')
    a('s_cbranch_scc1 L_aux1w')
    a('s_mul_i32 s4, s2, 144')
    a(f's_add_u32 s4, s4, {S1P + 16384}')
    a('v_mul_u32_u24 v102, 53248, v7')
    a('v_lshl_add_u32 v102, v6, 4, v102')
    a('v_add_u32 v102, s4, v102')
    a('v_add_u32 v103, 106496, v102')
    a('v_add_u32 v104, 18432, v102')
    a('v_add_u32 v105, 18432, v103')
    a('v_mul_u32_u24 v100, 192, v7')
    a('v_lshl_add_u32 v100, v6, 4, v100')
    a(f's_mov_b32 s14, {SPIN}')
    a('s_mov_b32 s15, 1')
    a('s_mov_b64 exec, 0x01ff01ff')
    a('L_guloop:')
    for k in range(4):
        a(f'global_load_dwordx4 {vr(80+4*k)}, v{102+k}, {sp(WS)} sc1')
    a('s_cmp_eq_u32 s15, 0')
    a('s_cbranch_scc1 L_gu2')
    a('s_mov_b64 exec, -1')
    finload(8, 2, 3)
    finload(44, 4, 5)
    a('s_mov_b64 exec, 0x01ff01ff')
    a('s_mov_b32 s15, 0')
    a('s_waitcnt vmcnt(18)')
    a('s_branch L_gu3')
    a('L_gu2:')
    a('s_waitcnt vmcnt(0)')
    a('L_gu3:')
    a('s_sub_u32 s14, s14, 1')
    a('s_cbranch_scc1 L_guok')
    tagcheck(list(range(80, 96)), 150, 96, 97)
    a('s_cbranch_vccnz L_guloop')
    a('L_guok:')
    for r in range(4):
        a(f'v_add_f32 v{80+r}, v{80+r}, v{84+r}')
        a(f'v_add_f32 v{88+r}, v{88+r}, v{92+r}')
    rnd2(80, 81, 96); rnd2(82, 83, 97); rnd2(88, 89, 96); rnd2(90, 91, 97)
    a('s_mov_b32 s45, 0xbfb8aa3b')
    for r in range(4): a(f'v_mul_f32 v{84+r}, s45, v{80+r}')
    for r in range(4): a(f'v_exp_f32 v{84+r}, v{84+r}')
    for r in range(4): a(f'v_add_f32 v{84+r}, 1.0, v{84+r}')
    for r in range(4): a(f'v_rcp_f32 v{84+r}, v{84+r}')
    for r in range(4): a(f'v_mul_f32 v{80+r}, v{80+r}, v{84+r}')
    rnd2(80, 81, 96); rnd2(82, 83, 97)
    for r in range(4): a(f'v_mul_f32 v{80+r}, v{80+r}, v{88+r}')
    for r in range(4): a(f'v_cvt_pk_bf16_f32 v{80+r}, v{80+r}, v{80+r}')
    a(f'ds_write_b128 v100, {vr(80)} offset:{L_XD2}')
    a('s_mov_b64 exec, -1')
    a('s_branch L_B3')
    a('L_aux1w:')
    finload(8, 2, 3)
    finload(44, 4, 5)
    a('L_B3:')
    a('v_bfe_u32 v4, v0, 3, 1')
    a('v_mul_u32_u24 v4, 192, v4')
    a('v_lshrrev_b32 v7, 4, v0')
    a('v_lshl_add_u32 v5, v7, 2, v4')
    a('v_lshl_add_u32 v4, v7, 4, v4')
    a('s_xor_b32 s4, s2, 128')
    a('s_lshl_b32 s4, s4, 6')
    a('s_lshl_b32 s5, s3, 17')
    a('s_add_u32 s4, s4, s5')
    a(f's_add_u32 s4, s4, {H3}')
    a('v_lshrrev_b32 v2, 5, v0')
    a('v_mul_u32_u24 v2, 36, v2')
    a('v_bfe_u32 v3, v0, 1, 3')
    a('v_add_u32 v2, v2, v3')
    a('v_lshlrev_b32 v2, 14, v2')
    a('v_and_b32 v3, 1, v0')
    a('v_lshl_add_u32 v2, v3, 5, v2')
    a('v_bfe_u32 v3, v0, 4, 1')
    a('v_lshl_add_u32 v2, v3, 4, v2')
    a('v_add_u32 v2, s4, v2')
    a('s_waitcnt lgkmcnt(0)')
    a('s_barrier')
    stamp(8)
    XV = 96
    a(f'ds_read_b128 {vr(XV)}, v4 offset:{L_XD2}')
    a(f'ds_read_b128 {vr(XV+4)}, v4 offset:{L_XD2+64}')
    a(f'ds_read_b32 v{XV+8}, v5 offset:{L_XD2+128}')
    a('s_waitcnt lgkmcnt(0)')
    FA = 112
    for t in range(9):
        for q in range(4):
            a(f'v_and_b32 v{FA+4*t+q}, v{XV+t}, v{M0+q}')
    a('s_waitcnt vmcnt(0)')
    for t in range(9):
        a(f'v_mfma_f32_16x16x32_bf16 {vr(152)}, {vr(FA+4*t)}, {vr(8+4*t)}, {"0" if t == 0 else vr(152)}')
    a('s_cmp_lg_u32 s3, 1')
    a('s_cbranch_scc1 L_pub1')
    for t in range(9):
        a(f'v_mfma_f32_16x16x32_bf16 {vr(156)}, {vr(FA+4*t)}, {vr(44+4*t)}, {"0" if t == 0 else vr(156)}')
    a(f'v_add_u32 v3, {3*131072}, v2')
    a('s_nop 7')
    tagify(156, 4, 150)
    a('s_mov_b32 exec_lo, 0x00ff00ff')
    a('s_mov_b32 exec_hi, 0x00ff00ff')
    a(f'global_store_dwordx4 v3, {vr(156)}, {sp(WS)} sc1')
    a('s_mov_b64 exec, -1')
    a('L_pub1:')
    a('s_nop 7')
    tagify(152, 4, 150)
    a(f'global_store_dwordx4 v2, {vr(152)}, {sp(WS)} sc1')
    stamp(9)
    a('s_cmp_lg_u32 s3, 2')
    a('s_cbranch_scc1 L_auxend')
    a('s_cmp_ge_u32 s2, 72')
    a('s_cbranch_scc1 L_auxend')
    a('s_lshl_b32 s4, s2, 14')
    a(f's_add_u32 s4, s4, {H3 + 4096}')
    a('v_lshl_add_u32 v4, v0, 4, s4')
    a('v_add_u32 v5, 8192, v4')
    a('v_and_b32 v6, 3, v0')
    a('v_lshlrev_b32 v6, 3, v6')
    a('v_bfe_u32 v7, v0, 4, 1')
    a('v_lshl_add_u32 v6, v7, 2, v6')
    a('s_lshl_b32 s4, s2, 5')
    a('v_add_u32 v6, s4, v6')
    a(f'global_load_dword v100, v6, {sp(X)}')
    for part, va, base in (('B', 5, 40), ('A', 4, 8)):
        a(f's_mov_b32 s14, {SPIN}')
        a(f'L_r{part}:')
        for k in range(8):
            a(f'global_load_dwordx4 {vr(base+4*k)}, v{va}, {sp(WS)} offset:{1024*k - 4096} sc1')
        a('s_sub_u32 s14, s14, 1')
        a(f's_cbranch_scc1 L_r{part}ok')
        a('s_waitcnt vmcnt(0)')
        tagcheck(list(range(base, base + 32)), 150, 96, 97)
        a(f's_cbranch_vccnz L_r{part}')
        a(f'L_r{part}ok:')
        a('s_waitcnt vmcnt(0)')
        for k in (4, 2, 1):
            for kk in range(k):
                for r in range(4):
                    a(f'v_add_f32 v{base+4*kk+r}, v{base+4*kk+r}, v{base+4*(kk+k)+r}')
        stamp(10 if part == 'B' else 11)
    for r in range(4): a(f'v_permlane32_swap_b32 v{8+r}, v{40+r}')
    for r in range(4): a(f'v_add_f32 v{8+r}, v{8+r}, v{40+r}')
    a('v_permlane16_swap_b32 v8, v10')
    a('v_permlane16_swap_b32 v9, v11')
    a('v_add_f32 v8, v8, v10')
    a('v_add_f32 v9, v9, v11')
    dpp('v_add_f32', 8, 8, 8, 'row_ror:8')
    dpp('v_add_f32', 9, 9, 9, 'row_ror:8')
    dpp('v_add_f32', 8, 8, 8, 'row_ror:4')
    dpp('v_add_f32', 9, 9, 9, 'row_ror:4')
    a('v_cvt_pk_bf16_f32 v8, v8, v9')
    a('v_mov_b32 v9, v8')
    a('v_permlane32_swap_b32 v8, v9')
    a('v_lshlrev_b32 v10, 16, v100')
    a('v_and_b32 v11, s43, v100')
    a('v_lshlrev_b32 v12, 16, v8')
    a('v_and_b32 v13, s43, v8')
    a('v_add_f32 v10, v10, v12')
    a('v_add_f32 v11, v11, v13')
    rnd2(10, 11, 12)
    a('v_lshlrev_b32 v12, 16, v9')
    a('v_and_b32 v13, s43, v9')
    a('v_add_f32 v10, v10, v12')
    a('v_add_f32 v11, v11, v13')
    a('v_cvt_pk_bf16_f32 v10, v10, v11')
    a('s_mov_b64 exec, 0x000f000f')
    a(f'global_store_dword v6, v10, {sp(OUT)}')
    a('s_cmp_lg_u32 s2, 0')
    a('s_cbranch_scc1 L_rend')
    a('s_mov_b64 exec, 1')
    a(f'v_mov_b32 v11, s{sT}')
    a('v_mov_b32 v12, 0')
    a(f'global_store_dword v12, v11, {sp(WS)} offset:{E_OFF} sc1')
    a('L_rend:')
    stamp(12)
    dump([10, 11, 12])
    a('s_endpgm')
    a('L_auxend:')
    if stamps:
        a('s_cmp_lg_u32 s3, 0')
        a('s_cbranch_scc1 L_end')
        dump([0, 1, 2, 3, 4, 7, 8, 9])
    a('L_end:')
    a('s_endpgm')
    lines, n = hazard.fix(a.l)
    body = '\n'.join(lines) + '\n'
    return kernel_file([(NAME + '_kernel', 256, 768, LDS_BYTES)], [(NAME + '_kernel', body, 168, 96, 168)])

if __name__ == '__main__':
    open('v1.s', 'w').write(gen(False))
    open('v1_st.s', 'w').write(gen(True))
    open('v1_dbg.s', 'w').write(gen('dbg'))
```

```python
import sys
from asmlib import *
import hazard

E_OFF, H2M, S1P, H2D, H3 = 0x0, 0x1000, 0x10000, 0x50000, 0xA0000
STAMP = 0x3000000
L_XD1 = 0
L_Q = 4608
L_XD2 = 5120
L_CNT = 5632
L_ML = 5696
L_O = 6144
LDS_BYTES = 6144 + 8192
SPIN = 30000

def gen(stamps=False, ntKV='nt', ntW='nt'):
    a = Asm()
    st_used = {}
    def stamp(slot):
        if stamps == 'dbl' and slot != 0: return
        if stamps:
            a(f's_memrealtime s[{60+2*slot}:{61+2*slot}]')
    def dump(slots):
        if not stamps or stamps == 'dbl': return
        a('s_waitcnt lgkmcnt(0)')
        a('s_mov_b64 exec, 1')
        if stamps == 'dbg':
            a('v_mov_b32 v1, 0')
            for s_ in slots:
                if s_ == 7:
                    a('s_cmp_lt_u32 s2, 128')
                    a('s_cselect_b32 s74, 0, s74')
                a(f'v_mov_b32 v2, s{60+2*s_}')
                if s_ == 0:
                    a('global_atomic_umax v1, v2, s[36:37] offset:52')
                    a('s_not_b32 s60, s60')
                    a('v_mov_b32 v3, s60')
                    a('global_atomic_umax v1, v3, s[36:37]')
                else:
                    a(f'global_atomic_umax v1, v2, s[36:37] offset:{4*s_}')
            return
        a(f's_lshl_b32 s58, s2, 6')
        a(f's_add_u32 s58, s58, {STAMP}')
        a('v_mov_b32 v1, s58')
        for s_ in slots:
            a(f'v_mov_b32 v2, s{60+2*s_}')
            a(f'global_store_dword v1, v2, s[38:39] offset:{4*s_}')
    X, K, V, WQ, WO, W1, W3, W2, OUT, WS = 16, 18, 20, 22, 24, 28, 30, 32, 34, 38
    sp = lambda r: f's[{r}:{r+1}]'
    vr = lambda r, n=4: f'v[{r}:{r+n-1}]'
    M0 = 160
    sT = 40
    def masks():
        a('v_and_b32 v6, 1, v0')
        a('v_lshlrev_b32 v6, 4, v6')
        a('v_mov_b32 v7, 0xffff')
        a('v_lshlrev_b32 v7, v6, v7')
        a('v_bfe_u32 v6, v0, 1, 2')
        for k in range(4):
            a(f'v_cmp_eq_u32 vcc, {k}, v6')
            a(f'v_cndmask_b32 v{M0+k}, 0, v7, vcc')
    def tag_setup(vT):
        a(f's_add_u32 s{sT}, s{sT}, 1')
        a('s_movk_i32 s41, 0x3ff')
        a(f's_and_b32 s42, s{sT}, s41')
        a(f'v_mov_b32 v{vT}, s42')
    def tagify(r, n, vT):
        for k in range(n):
            a(f'v_bfi_b32 v{r+k}, s41, v{vT}, v{r+k}')
    def tagcheck(regs, vT, t0, t1):
        assert len(regs) % 2 == 0
        first = True
        for k in range(0, len(regs), 2):
            d = t0 if first else t1
            a(f'v_bitop3_b32 v{d}, v{regs[k]}, v{regs[k+1]}, v{vT} bitop3:0x7e')
            if not first:
                a(f'v_or_b32 v{t0}, v{t0}, v{t1}')
            first = False
        a(f'v_and_b32 v{t0}, s41, v{t0}')
        a(f'v_cmp_ne_u32 vcc, 0, v{t0}')
    def xor16(op, r, t):
        a(f'v_mov_b32 v{t}, v{r}')
        a(f'v_permlane16_swap_b32 v{r}, v{t}')
        a(f'{op} v{r}, v{r}, v{t}')
    def xor32(op, r, t):
        a(f'v_mov_b32 v{t}, v{r}')
        a(f'v_permlane32_swap_b32 v{r}, v{t}')
        a(f'{op} v{r}, v{r}, v{t}')
    def dpp(op, d, s0, s1, ctl):
        a(f'{op}_dpp v{d}, v{s0}, v{s1} {ctl} row_mask:0xf bank_mask:0xf')
    def rnd2(r0, r1, t):
        a(f'v_cvt_pk_bf16_f32 v{t}, v{r0}, v{r1}')
        a(f'v_lshlrev_b32 v{r0}, 16, v{t}')
        a(f'v_and_b32 v{r1}, s43, v{t}')

    a('s_cmp_ge_u32 s2, 256')
    a('s_cbranch_scc1 L_end')
    stamp(0)
    a('s_load_dwordx16 s[16:31], s[0:1], 0')
    a('s_load_dwordx8 s[32:39], s[0:1], 64')
    a('v_lshrrev_b32 v1, 6, v0')
    a('v_and_b32 v0, 63, v0')
    a('v_readfirstlane_b32 s3, v1')
    a('s_mov_b32 s43, 0xffff0000')
    a('v_and_b32 v6, 15, v0')
    a('v_lshrrev_b32 v7, 4, v0')
    a('s_cmp_lt_u32 s3, 4')
    a('s_cbranch_scc1 L_aux')
    KR, VR, QR, DT, OA = 8, 72, 136, 144, 164
    a('v_lshrrev_b32 v2, 1, v6')
    a('v_lshlrev_b32 v2, 8, v2')
    a('v_and_b32 v3, 1, v6')
    a('v_lshl_add_u32 v2, v3, 6, v2')
    a('v_lshl_add_u32 v2, v7, 4, v2')
    a('v_lshlrev_b32 v4, 4, v6')
    a('v_lshl_add_u32 v4, v7, 9, v4')
    a('v_add_u32 v2, 4096, v2')
    a('v_add_u32 v3, 8192, v2')
    a('v_add_u32 v4, 4096, v4')
    a('v_add_u32 v5, 8192, v4')
    a('s_lshr_b32 s4, s2, 3')
    a('s_lshl_b32 s4, s4, 23')
    a('s_and_b32 s5, s2, 7')
    a('s_lshl_b32 s5, s5, 17')
    a('s_add_u32 s4, s4, s5')
    a('s_lshl_b32 s5, s3, 14')
    a('s_add_u32 s4, s4, s5')
    a(f's_add_u32 s4, s4, {7340032 - 4*16384}')
    a('s_waitcnt lgkmcnt(0)')
    a(f's_add_u32 s{K}, s{K}, s4')
    a(f's_addc_u32 s{K+1}, s{K+1}, 0')
    a(f's_add_u32 s{V}, s{V}, s4')
    a(f's_addc_u32 s{V+1}, s{V+1}, 0')
    for t in range(8):
        for jj in range(2):
            off = t * 2048 + jj * 128
            vv, o = (2, off - 4096) if off < 8192 else (3, off - 12288)
            a(f'global_load_dwordx4 {vr(KR + 8*t + 4*jj)}, v{vv}, {sp(K)} offset:{o} {ntKV}')
    for t in range(8):
        for u in range(2):
            off = t * 2048 + u * 256
            vv, o = (4, off - 4096) if off < 8192 else (5, off - 12288)
            a(f'global_load_dwordx4 {vr(VR + 8*t + 4*u)}, v{vv}, {sp(V)} offset:{o} {ntKV}')
    a(f's_load_dword s{sT}, {sp(WS)}, {E_OFF}')
    masks()
    a('v_bfe_u32 v2, v0, 3, 1')
    a('v_lshlrev_b32 v2, 8, v2')
    a('v_and_b32 v3, 1, v0')
    a('v_lshl_add_u32 v2, v3, 6, v2')
    a('v_lshrrev_b32 v3, 4, v0')
    a('v_lshl_add_u32 v2, v3, 4, v2')
    a('s_mov_b32 vcc_lo, 0xaaaaaaaa')
    a('s_mov_b32 vcc_hi, 0xaaaaaaaa')
    a('s_mov_b32 s44, 0x3db504f3')
    a('s_mov_b32 s45, 0x3fb8aa3b')
    a('s_barrier')
    a('s_setprio 2')
    a(f'ds_read_b128 {vr(QR)}, v2 offset:{L_Q}')
    a(f'ds_read_b128 {vr(QR+4)}, v2 offset:{L_Q+128}')
    a('s_waitcnt lgkmcnt(0)')
    def extract(t):
        d = DT + 4 * (t % 4)
        a(f'v_cndmask_b32 v{d}, v{d}, v{d+1}, vcc')
        a(f'v_cndmask_b32 v{d+2}, v{d+2}, v{d+3}, vcc')
        return d
    def extract2(t):
        d = DT + 4 * (t % 4)
        dpp('v_add_f32', KR + 8*t, d, d, 'quad_perm:[1,0,3,2]')
        dpp('v_add_f32', KR + 8*t + 1, d + 2, d + 2, 'quad_perm:[1,0,3,2]')
    for t in range(8 + 3):
        if t < 8:
            d = DT + 4 * (t % 4)
            a(f's_waitcnt vmcnt({30 - 2*t})')
            a(f'v_mfma_f32_16x16x32_bf16 {vr(d)}, {vr(KR+8*t)}, {vr(QR)}, 0')
            a(f'v_mfma_f32_16x16x32_bf16 {vr(d)}, {vr(KR+8*t+4)}, {vr(QR+4)}, {vr(d)}')
        if 3 <= t: extract2(t - 3)
        if 2 <= t < 10: extract(t - 2)
    S = lambda s: KR + 8 * (s >> 1) + (s & 1)
    for t in range(8):
        rnd2(S(2*t), S(2*t+1), QR + (t & 1))
        a(f'v_mul_f32 v{S(2*t)}, s44, v{S(2*t)}')
        a(f'v_mul_f32 v{S(2*t+1)}, s44, v{S(2*t+1)}')
        rnd2(S(2*t), S(2*t+1), QR + 2 + (t & 1))
    a(f'v_max3_f32 v6, v{S(0)}, v{S(1)}, v{S(2)}')
    for s in range(3, 15, 2):
        a(f'v_max3_f32 v6, v6, v{S(s)}, v{S(s+1)}')
    a(f'v_max_f32 v6, v6, v{S(15)}')
    xor16('v_max_f32', 6, 7)
    xor32('v_max_f32', 6, 7)
    a('v_mul_f32 v6, s45, v6')
    for s in range(16):
        a(f'v_fma_f32 v{S(s)}, v{S(s)}, s45, -v6')
    for s in range(16):
        a(f'v_exp_f32 v{S(s)}, v{S(s)}')
    a(f'v_add_f32 v7, v{S(0)}, v{S(1)}')
    for s in range(2, 16):
        a(f'v_add_f32 v7, v7, v{S(s)}')
    for t in range(8):
        t0, t1 = QR + 2 * (t & 1), QR + 2 * (t & 1) + 1
        a(f'v_cvt_pk_bf16_f32 v{t0}, v{S(2*t)}, v{S(2*t)}')
        a(f'v_cvt_pk_bf16_f32 v{t1}, v{S(2*t+1)}, v{S(2*t+1)}')
        for k in range(4):
            a(f'v_and_b32 v{KR+8*t+k}, v{t0}, v{M0+k}')
        for k in range(4):
            a(f'v_and_b32 v{KR+8*t+4+k}, v{t1}, v{M0+k}')
    xor16('v_add_f32', 7, 5)
    xor32('v_add_f32', 7, 5)
    a('s_sub_u32 s4, s3, 4')
    a('s_lshl_b32 s5, s4, 10')
    a('v_lshl_add_u32 v2, v0, 4, s5')
    a('s_lshl_b32 s5, s4, 2')
    a('v_lshl_add_u32 v3, v0, 3, s5')
    a('v_mov_b32 v4, 1')
    a('v_mov_b32 v5, 0')
    for s in range(16):
        a(f's_waitcnt vmcnt({15 - s})')
        c = '0' if s == 0 else vr(OA)
        a(f'v_mfma_f32_16x16x32_bf16 {vr(OA)}, {vr(KR + 4*s)}, {vr(VR + 4*s)}, {c}')
    a('s_mov_b64 exec, 0x101')
    a(f'ds_write2_b32 v3, v6, v7 offset0:{L_ML//4 % 256} offset1:{L_ML//4 % 256 + 8}' if False else f'ds_write_b32 v3, v6 offset:{L_ML}')
    a(f'ds_write_b32 v3, v7 offset:{L_ML+32}')
    a('s_mov_b64 exec, -1')
    a(f'ds_write_b128 v2, {vr(OA)} offset:{L_O}')
    a('s_mov_b64 exec, 1')
    a(f'ds_add_rtn_u32 v4, v5, v4 offset:{L_CNT}')
    a('s_mov_b64 exec, -1')
    a('s_waitcnt lgkmcnt(0)')
    a('v_readfirstlane_b32 s4, v4')
    a('s_cmp_lg_u32 s4, 7')
    a('s_cbranch_scc1 L_end')
    stamp(5)
    a('s_setprio 3')
    a('v_lshrrev_b32 v2, 5, v0')
    a('v_lshlrev_b32 v2, 6, v2')
    a('v_lshlrev_b32 v3, 4, v0')
    a(f'ds_read_b128 {vr(8)}, v2 offset:{L_ML}')
    a(f'ds_read_b128 {vr(12)}, v2 offset:{L_ML+16}')
    a(f'ds_read_b128 {vr(16)}, v2 offset:{L_ML+32}')
    a(f'ds_read_b128 {vr(20)}, v2 offset:{L_ML+48}')
    for w in range(8):
        a(f'ds_read_b128 {vr(24+4*w)}, v3 offset:{L_O + 1024*w}')
    tag_setup(60)
    a('s_lshr_b32 s4, s2, 3')
    a('s_and_b32 s5, s4, 15')
    a('s_lshr_b32 s4, s4, 4')
    a('s_lshl_b32 s4, s4, 3')
    a('s_and_b32 s6, s2, 7')
    a('s_add_u32 s4, s4, s6')
    a('s_lshl_b32 s6, s5, 14')
    a('s_lshl_b32 s7, s4, 7')
    a('s_add_u32 s6, s6, s7')
    a(f's_add_u32 s6, s6, {H2D}')
    a('s_lshl_b32 s7, s5, 11')
    a('s_lshl_b32 s8, s4, 4')
    a('s_add_u32 s7, s7, s8')
    a(f's_add_u32 s7, s7, {H2M}')
    a('v_lshrrev_b32 v4, 5, v0')
    a('v_bfe_u32 v5, v0, 2, 2')
    a('v_lshl_add_u32 v4, v4, 2, v5')
    a('v_lshl_add_u32 v62, v4, 8, s7')
    a('v_lshl_add_u32 v61, v4, 11, s6')
    a('v_and_b32 v5, 3, v0')
    a('v_lshl_add_u32 v61, v5, 5, v61')
    a('v_bfe_u32 v5, v0, 4, 1')
    a('v_lshl_add_u32 v61, v5, 4, v61')
    a('s_waitcnt lgkmcnt(8)')
    a('v_max3_f32 v64, v8, v9, v10')
    a('v_max3_f32 v64, v64, v11, v12')
    a('v_max3_f32 v64, v64, v13, v14')
    a('v_max_f32 v64, v64, v15')
    tagify(64, 1, 60)
    for w in range(8):
        a(f'v_sub_f32 v{8+w}, v{8+w}, v64')
    for w in range(8):
        a(f'v_exp_f32 v{8+w}, v{8+w}')
    a('v_mul_f32 v65, v8, v16')
    for w in range(1, 8):
        a(f'v_fmac_f32 v65, v{8+w}, v{16+w}')
    for w in range(8):
        a(f's_waitcnt lgkmcnt({7-w})')
        for r in range(4):
            if w == 0: a(f'v_mul_f32 v{68+r}, v8, v{24+r}')
            else: a(f'v_fmac_f32 v{68+r}, v{8+w}, v{24+4*w+r}')
    tagify(68, 4, 60)
    tagify(65, 1, 60)
    a(f'global_store_dwordx4 v61, {vr(68)}, {sp(WS)} sc1')
    a('v_mov_b32 v66, v64')
    a('v_mov_b32 v67, v65')
    a('s_mov_b32 exec_lo, 0x1111')
    a('s_mov_b32 exec_hi, 0x1111')
    a(f'global_store_dwordx4 v62, {vr(64)}, {sp(WS)} sc1')
    stamp(6)
    dump([5, 6])
    a('s_endpgm')

    a('L_aux:')
    a('s_setprio 3')
    masks_done = False
    a('s_cmp_lg_u32 s3, 0')
    a('s_cbranch_scc1 L_auxB1')
    RG, XV, AT, DA = 8, 104, 128, 144
    a('s_cmp_ge_u32 s2, 208')
    a('s_cbranch_scc1 L_nos1')
    a('s_and_b32 s5, s2, 1')
    a('s_lshr_b32 s4, s2, 1')
    a('s_lshl_b32 s7, s4, 7')
    a('s_waitcnt lgkmcnt(0)')
    a('s_movk_i32 s6, 9216')
    a('s_cmp_lt_u32 s4, 32')
    a('s_cselect_b32 s6, 8192, s6')
    a(f's_cselect_b32 s8, s{WQ}, s{W1}')
    a(f's_cselect_b32 s9, s{WQ+1}, s{W1+1}')
    a('s_cselect_b32 s12, 0, 32')
    a('s_cmp_lt_u32 s4, 68')
    a(f's_cselect_b32 s8, s8, s{W3}')
    a(f's_cselect_b32 s9, s9, s{W3+1}')
    a('s_cselect_b32 s12, s12, 0x44')
    a('s_sub_u32 s4, s4, s12')
    a('s_lshl_b32 s4, s4, 8')
    a('s_mul_i32 s10, s6, 288')
    a('s_mul_i32 s12, s10, s5')
    a('s_add_u32 s4, s4, s12')
    a('s_add_u32 s8, s8, s4')
    a('s_addc_u32 s9, s9, 0')
    a('s_sub_u32 s10, s10, 4096')
    a('s_mov_b32 s11, 0x20000')
    a('s_lshl_b32 s13, s6, 2')
    a('v_mul_u32_u24 v2, s13, v7')
    a('v_lshl_add_u32 v2, v6, 4, v2')
    a('s_mul_i32 s13, s6, 13')
    a('s_mov_b32 s12, 0')
    a('v_lshrrev_b32 v3, 5, v0')
    a('v_mul_u32_u24 v3, 1152, v3')
    a('v_and_b32 v4, 31, v0')
    a('v_mul_u32_u24 v4, 36, v4')
    a('v_add_u32 v3, v3, v4')
    XR = 104
    a(f'global_load_dwordx3 {vr(XR,3)}, v3, {sp(X)}')
    a(f'global_load_dwordx3 {vr(XR+4,3)}, v3, {sp(X)} offset:12')
    a(f'global_load_dwordx3 {vr(XR+8,3)}, v3, {sp(X)} offset:24')
    raw = [XR, XR+1, XR+2, XR+4, XR+5, XR+6, XR+8, XR+9, XR+10]
    def s1load(k):
        a(f'buffer_load_dwordx4 {vr(RG+4*k)}, v2, s[8:11], s12 offen {ntW}')
        a(f's_add_u32 s12, s12, s{13 if k % 4 == 3 else 6}')
    for k in range(24): s1load(k)
    a(f's_load_dword s{sT}, {sp(WS)}, {E_OFF}')
    masks()
    a('v_lshlrev_b32 v3, 1, v3')
    a('s_waitcnt vmcnt(24)')
    U = 116
    for k in range(9):
        a(f'v_lshlrev_b32 v{U+2*k}, 16, v{raw[k]}')
        a(f'v_and_b32 v{U+2*k+1}, s43, v{raw[k]}')
    def red32(r, t):
        dpp('v_add_f32', r, r, r, 'quad_perm:[1,0,3,2]')
        dpp('v_add_f32', r, r, r, 'quad_perm:[2,3,0,1]')
        dpp('v_add_f32', r, r, r, 'row_half_mirror')
        dpp('v_add_f32', r, r, r, 'row_mirror')
        xor16('v_add_f32', r, t)
    a(f'v_add_f32 v134, v{U}, v{U+1}')
    for k in range(2, 18): a(f'v_add_f32 v134, v134, v{U+k}')
    red32(134, 135)
    a('s_mov_b32 s14, 0x3ae38e39')
    a('v_mul_f32 v134, s14, v134')
    a(f'v_sub_f32 v135, v{U}, v134')
    a('v_mul_f32 v136, v135, v135')
    for k in range(1, 18):
        a(f'v_sub_f32 v135, v{U+k}, v134')
        a('v_fmac_f32 v136, v135, v135')
    red32(136, 135)
    a('v_mul_f32 v136, s14, v136')
    rnd2(134, 136, 135)
    a('v_add_f32 v136, 0x3727c5ac, v136')
    rnd2(136, 137, 135)
    a('v_sqrt_f32 v136, v136')
    rnd2(136, 137, 135)
    a('v_rcp_f32 v136, v136')
    for k in range(0, 18, 2):
        a(f'v_sub_f32 v{U+k}, v{U+k}, v134')
        a(f'v_sub_f32 v{U+k+1}, v{U+k+1}, v134')
        rnd2(U + k, U + k + 1, 135)
        a(f'v_mul_f32 v{U+k}, v{U+k}, v136')
        a(f'v_mul_f32 v{U+k+1}, v{U+k+1}, v136')
        a(f'v_cvt_pk_bf16_f32 v{U+k}, v{U+k}, v{U+k}')
        a(f'v_cvt_pk_bf16_f32 v{U+k+1}, v{U+k+1}, v{U+k+1}')
        a(f'ds_write_b64 v3, {vr(U+k,2)} offset:{L_XD1 + 4*k}')
    stamp(1)
    a('v_bfe_u32 v3, v0, 3, 1')
    a('v_mul_u32_u24 v3, 2304, v3')
    a('v_lshrrev_b32 v4, 4, v0')
    a('v_lshl_add_u32 v3, v4, 4, v3')
    a('s_mul_i32 s14, s5, 1152')
    a('v_add_u32 v3, s14, v3')
    for k in range(4): a(f'v_mov_b32 v{DA+k}, 0')
    a('s_mov_b32 s14, 3')
    a('L_s1loop:')
    for T in range(6):
        a(f'ds_read_b128 {vr(XV+4*T)}, v3 offset:{L_XD1 + 64*T}')
    a('v_add_u32 v3, 384, v3')
    a('s_waitcnt lgkmcnt(0)')
    def s1and(k):
        for q in range(4):
            a(f'v_and_b32 v{AT + 4*(k&1) + q}, v{XV+k}, v{M0+q}')
    s1and(0)
    for k in range(24):
        if k < 23: s1and(k + 1)
        a('s_waitcnt vmcnt(23)')
        a(f'v_mfma_f32_16x16x32_bf16 {vr(DA)}, {vr(AT+4*(k&1))}, {vr(RG+4*k)}, {vr(DA)}')
        s1load(k)
    a('s_sub_u32 s14, s14, 1')
    a('s_cmp_lg_u32 s14, 0')
    a('s_cbranch_scc1 L_s1loop')
    stamp(2)
    tag_setup(150)
    a('s_mul_i32 s4, s5, 26624')
    a('s_add_u32 s4, s4, s7')
    a('s_lshl_b32 s4, s4, 2')
    a(f's_add_u32 s4, s4, {S1P}')
    a('v_lshrrev_b32 v3, 5, v0')
    a('v_mul_u32_u24 v3, 53248, v3')
    a('v_and_b32 v4, 15, v0')
    a('v_lshl_add_u32 v3, v4, 5, v3')
    a('v_bfe_u32 v4, v0, 4, 1')
    a('v_lshl_add_u32 v3, v4, 4, v3')
    a('v_add_u32 v3, s4, v3')
    tagify(DA, 4, 150)
    a(f'global_store_dwordx4 v3, {vr(DA)}, {sp(WS)} sc1')
    a('s_branch L_qpoll')
    a('L_nos1:')
    a('s_waitcnt lgkmcnt(0)')
    a(f's_load_dword s{sT}, {sp(WS)}, {E_OFF}')
    masks()
    a('s_waitcnt lgkmcnt(0)')
    tag_setup(150)
    stamp(1); stamp(2)
    a('L_qpoll:')
    a('v_mov_b32 v8, 0')
    a('v_mov_b32 v9, 0')
    a('v_lshlrev_b32 v3, 3, v0')
    a(f'ds_write_b64 v3, v[8:9] offset:{L_XD2}')
    a(f'ds_write_b32 v8, v8 offset:{L_CNT}')
    a('s_lshr_b32 s4, s2, 3')
    a('s_lshr_b32 s5, s4, 4')
    a('s_and_b32 s4, s4, 15')
    a('s_mul_i32 s5, s5, 53248')
    a('s_lshl_b32 s4, s4, 10')
    a('s_add_u32 s4, s4, s5')
    a(f's_add_u32 s4, s4, {S1P}')
    a('v_lshl_add_u32 v4, v0, 4, s4')
    a('v_add_u32 v5, 106496, v4')
    a(f's_mov_b32 s14, {SPIN}')
    a('L_qloop:')
    a(f'global_load_dwordx4 {vr(8)}, v4, {sp(WS)} sc1')
    a(f'global_load_dwordx4 {vr(12)}, v5, {sp(WS)} sc1')
    a('s_sub_u32 s14, s14, 1')
    a('s_cbranch_scc1 L_qok')
    a('s_waitcnt vmcnt(0)')
    tagcheck(list(range(8, 16)), 150, 16, 17)
    a('s_cbranch_vccnz L_qloop')
    a('L_qok:')
    a('s_waitcnt vmcnt(0)')
    for r in range(4): a(f'v_add_f32 v{8+r}, v{8+r}, v{12+r}')
    a('v_cvt_pk_bf16_f32 v8, v8, v9')
    a('v_cvt_pk_bf16_f32 v9, v10, v11')
    a(f'ds_write_b64 v3, v[8:9] offset:{L_Q}')
    stamp(3)
    a('s_branch L_B1')
    a('L_auxB1:')
    a('s_waitcnt lgkmcnt(0)')
    a(f's_load_dword s{sT}, {sp(WS)}, {E_OFF}')
    masks()
    a('s_waitcnt lgkmcnt(0)')
    tag_setup(150)
    a('L_B1:')
    a('s_mov_b32 s10, 41472')
    a('s_cmp_ge_u32 s2, 128')
    a(f's_cselect_b32 s8, s{WO}, s{W2}')
    a(f's_cselect_b32 s9, s{WO+1}, s{W2+1}')
    a('s_cselect_b32 s10, 36864, s10')
    a('s_and_b32 s4, s2, 127')
    a('s_mul_i32 s4, s4, s10')
    a('s_add_u32 s8, s8, s4')
    a('s_addc_u32 s9, s9, 0')
    a('s_mov_b32 s11, 0x20000')
    a('s_movk_i32 s12, 18432')
    a('s_mov_b32 s13, 36864')
    a('v_and_b32 v6, 15, v0')
    a('v_lshrrev_b32 v7, 4, v0')
    a('s_lshl_b32 s4, s3, 8')
    a('v_lshl_add_u32 v3, v6, 4, s4')
    a('v_mul_u32_u24 v2, 1152, v7')
    a('v_add_u32 v3, v3, v2')
    a('v_mul_u32_u24 v2, 3456, v7')
    a('v_add_u32 v2, v2, v3')
    a('s_waitcnt lgkmcnt(0)')
    a('s_barrier')
    stamp(4)
    def finload(base, va, vb):
        for t in range(8):
            a(f'buffer_load_dwordx4 {vr(base+4*t)}, v{va}, s[8:11], {"0" if t < 4 else "s12"} offen offset:{1152*(t&3)} {ntW}')
        a(f'buffer_load_dwordx4 {vr(base+32)}, v{vb}, s[8:11], s13 offen {ntW}')
    a('s_cmp_eq_u32 s3, 1')
    a('s_cbranch_scc1 L_aux1')
    finload(8, 2, 3)
    a('s_cmp_lg_u32 s3, 0')
    a('s_cbranch_scc1 L_B3')
    a('s_cmp_lt_u32 s2, 128')
    a('s_cbranch_scc1 L_B3')
    a('s_and_b32 s4, s2, 127')
    a('s_lshl_b32 s5, s4, 11')
    a(f's_add_u32 s5, s5, {H2D}')
    a('s_lshl_b32 s4, s4, 8')
    a(f's_add_u32 s4, s4, {H2M}')
    a('v_lshrrev_b32 v6, 5, v0')
    a('v_and_b32 v7, 31, v0')
    a('v_lshlrev_b32 v4, 10, v6')
    a('v_lshl_add_u32 v4, v7, 4, v4')
    a('v_add_u32 v4, s5, v4')
    a('v_lshlrev_b32 v5, 7, v6')
    a('v_lshrrev_b32 v7, 3, v7')
    a('v_lshl_add_u32 v5, v7, 4, v5')
    a('v_add_u32 v5, s4, v5')
    a('v_mul_u32_u24 v100, 192, v6')
    a('v_and_b32 v7, 7, v0')
    a('v_lshl_add_u32 v100, v7, 4, v100')
    a('v_bfe_u32 v7, v0, 4, 1')
    a('v_lshl_add_u32 v100, v7, 3, v100')
    a(f's_mov_b32 s14, {SPIN}')
    a('L_h2loop:')
    a(f'global_load_dwordx4 {vr(80)}, v4, {sp(WS)} sc1')
    a(f'global_load_dwordx4 {vr(84)}, v4, {sp(WS)} offset:512 sc1')
    a(f'global_load_dwordx4 {vr(88)}, v5, {sp(WS)} sc1')
    a(f'global_load_dwordx4 {vr(92)}, v5, {sp(WS)} offset:64 sc1')
    a('s_sub_u32 s14, s14, 1')
    a('s_cbranch_scc1 L_h2ok')
    a('s_waitcnt vmcnt(0)')
    tagcheck(list(range(80, 96)), 150, 96, 97)
    a('s_cbranch_vccnz L_h2loop')
    a('L_h2ok:')
    a('s_waitcnt vmcnt(0)')
    a('v_max_f32 v96, v88, v92')
    dpp('v_max_f32', 96, 96, 96, 'row_ror:8')
    xor16('v_max_f32', 96, 97)
    a('v_sub_f32 v88, v88, v96')
    a('v_sub_f32 v92, v92, v96')
    a('v_exp_f32 v88, v88')
    a('v_exp_f32 v92, v92')
    a('v_mul_f32 v96, v88, v89')
    a('v_fmac_f32 v96, v92, v93')
    for r in range(4): a(f'v_mul_f32 v{80+r}, v88, v{80+r}')
    for r in range(4): a(f'v_fmac_f32 v{80+r}, v92, v{84+r}')
    dpp('v_add_f32', 96, 96, 96, 'row_ror:8')
    a('v_permlane16_swap_b32 v80, v82')
    a('v_permlane16_swap_b32 v81, v83')
    xor16('v_add_f32', 96, 97)
    a('v_add_f32 v80, v80, v82')
    a('v_add_f32 v81, v81, v83')
    a('v_rcp_f32 v96, v96')
    dpp('v_add_f32', 80, 80, 80, 'row_ror:8')
    dpp('v_add_f32', 81, 81, 81, 'row_ror:8')
    a('v_mul_f32 v80, v80, v96')
    a('v_mul_f32 v81, v81, v96')
    a('v_cvt_pk_bf16_f32 v80, v80, v80')
    a('v_cvt_pk_bf16_f32 v81, v81, v81')
    a(f'ds_write_b64 v100, v[80:81] offset:{L_XD2}')
    stamp(7)
    a('s_branch L_B3')
    a('L_aux1:')
    a('v_add_u32 v4, 768, v2')
    a('v_add_u32 v5, 768, v3')
    a('v_cmp_gt_u32 vcc, 8, v6')
    a('v_mov_b32 v101, 0x40000000')
    a('v_cndmask_b32 v4, v101, v4, vcc')
    a('v_cndmask_b32 v5, v101, v5, vcc')
    a('s_cmp_ge_u32 s2, 128')
    a('s_cbranch_scc1 L_aux1w')
    a('s_mul_i32 s4, s2, 144')
    a(f's_add_u32 s4, s4, {S1P + 16384}')
    a('v_mul_u32_u24 v102, 53248, v7')
    a('v_lshl_add_u32 v102, v6, 4, v102')
    a('v_add_u32 v102, s4, v102')
    a('v_add_u32 v103, 106496, v102')
    a('v_add_u32 v104, 18432, v102')
    a('v_add_u32 v105, 18432, v103')
    a('v_mul_u32_u24 v100, 192, v7')
    a('v_lshl_add_u32 v100, v6, 4, v100')
    a(f's_mov_b32 s14, {SPIN}')
    a('s_mov_b32 s15, 1')
    a('s_mov_b64 exec, 0x01ff01ff')
    a('L_guloop:')
    for k in range(4):
        a(f'global_load_dwordx4 {vr(80+4*k)}, v{102+k}, {sp(WS)} sc1')
    a('s_cmp_eq_u32 s15, 0')
    a('s_cbranch_scc1 L_gu2')
    a('s_mov_b64 exec, -1')
    finload(8, 2, 3)
    finload(44, 4, 5)
    a('s_mov_b64 exec, 0x01ff01ff')
    a('s_mov_b32 s15, 0')
    a('s_waitcnt vmcnt(18)')
    a('s_branch L_gu3')
    a('L_gu2:')
    a('s_waitcnt vmcnt(0)')
    a('L_gu3:')
    a('s_sub_u32 s14, s14, 1')
    a('s_cbranch_scc1 L_guok')
    tagcheck(list(range(80, 96)), 150, 96, 97)
    a('s_cbranch_vccnz L_guloop')
    a('L_guok:')
    for r in range(4):
        a(f'v_add_f32 v{80+r}, v{80+r}, v{84+r}')
        a(f'v_add_f32 v{88+r}, v{88+r}, v{92+r}')
    rnd2(80, 81, 96); rnd2(82, 83, 97); rnd2(88, 89, 96); rnd2(90, 91, 97)
    a('s_mov_b32 s45, 0xbfb8aa3b')
    for r in range(4): a(f'v_mul_f32 v{84+r}, s45, v{80+r}')
    for r in range(4): a(f'v_exp_f32 v{84+r}, v{84+r}')
    for r in range(4): a(f'v_add_f32 v{84+r}, 1.0, v{84+r}')
    for r in range(4): a(f'v_rcp_f32 v{84+r}, v{84+r}')
    for r in range(4): a(f'v_mul_f32 v{80+r}, v{80+r}, v{84+r}')
    rnd2(80, 81, 96); rnd2(82, 83, 97)
    for r in range(4): a(f'v_mul_f32 v{80+r}, v{80+r}, v{88+r}')
    for r in range(4): a(f'v_cvt_pk_bf16_f32 v{80+r}, v{80+r}, v{80+r}')
    a(f'ds_write_b128 v100, {vr(80)} offset:{L_XD2}')
    a('s_mov_b64 exec, -1')
    a('s_branch L_B3')
    a('L_aux1w:')
    finload(8, 2, 3)
    finload(44, 4, 5)
    a('L_B3:')
    a('v_bfe_u32 v4, v0, 3, 1')
    a('v_mul_u32_u24 v4, 192, v4')
    a('v_lshrrev_b32 v7, 4, v0')
    a('v_lshl_add_u32 v5, v7, 2, v4')
    a('v_lshl_add_u32 v4, v7, 4, v4')
    a('s_xor_b32 s4, s2, 128')
    a('s_lshl_b32 s4, s4, 6')
    a('s_lshl_b32 s5, s3, 17')
    a('s_add_u32 s4, s4, s5')
    a(f's_add_u32 s4, s4, {H3}')
    a('v_lshrrev_b32 v2, 5, v0')
    a('v_mul_u32_u24 v2, 36, v2')
    a('v_bfe_u32 v3, v0, 1, 3')
    a('v_add_u32 v2, v2, v3')
    a('v_lshlrev_b32 v2, 14, v2')
    a('v_and_b32 v3, 1, v0')
    a('v_lshl_add_u32 v2, v3, 5, v2')
    a('v_bfe_u32 v3, v0, 4, 1')
    a('v_lshl_add_u32 v2, v3, 4, v2')
    a('v_add_u32 v2, s4, v2')
    a('s_waitcnt lgkmcnt(0)')
    a('s_barrier')
    stamp(8)
    XV = 96
    a(f'ds_read_b128 {vr(XV)}, v4 offset:{L_XD2}')
    a(f'ds_read_b128 {vr(XV+4)}, v4 offset:{L_XD2+64}')
    a(f'ds_read_b32 v{XV+8}, v5 offset:{L_XD2+128}')
    a('s_waitcnt lgkmcnt(0)')
    FA = 112
    for t in range(9):
        for q in range(4):
            a(f'v_and_b32 v{FA+4*t+q}, v{XV+t}, v{M0+q}')
    a('s_waitcnt vmcnt(0)')
    for t in range(9):
        a(f'v_mfma_f32_16x16x32_bf16 {vr(152)}, {vr(FA+4*t)}, {vr(8+4*t)}, {"0" if t == 0 else vr(152)}')
    a('s_cmp_lg_u32 s3, 1')
    a('s_cbranch_scc1 L_pub1')
    for t in range(9):
        a(f'v_mfma_f32_16x16x32_bf16 {vr(156)}, {vr(FA+4*t)}, {vr(44+4*t)}, {"0" if t == 0 else vr(156)}')
    a(f'v_add_u32 v3, {3*131072}, v2')
    a('s_nop 7')
    tagify(156, 4, 150)
    a('s_mov_b32 exec_lo, 0x00ff00ff')
    a('s_mov_b32 exec_hi, 0x00ff00ff')
    a(f'global_store_dwordx4 v3, {vr(156)}, {sp(WS)} sc1')
    a('s_mov_b64 exec, -1')
    a('L_pub1:')
    a('s_nop 7')
    tagify(152, 4, 150)
    a(f'global_store_dwordx4 v2, {vr(152)}, {sp(WS)} sc1')
    stamp(9)
    a('s_cmp_lg_u32 s3, 2')
    a('s_cbranch_scc1 L_auxend')
    a('s_cmp_ge_u32 s2, 72')
    a('s_cbranch_scc1 L_auxend')
    a('s_lshl_b32 s4, s2, 14')
    a(f's_add_u32 s4, s4, {H3 + 4096}')
    a('v_lshl_add_u32 v4, v0, 4, s4')
    a('v_add_u32 v5, 8192, v4')
    a('v_and_b32 v6, 3, v0')
    a('v_lshlrev_b32 v6, 3, v6')
    a('v_bfe_u32 v7, v0, 4, 1')
    a('v_lshl_add_u32 v6, v7, 2, v6')
    a('s_lshl_b32 s4, s2, 5')
    a('v_add_u32 v6, s4, v6')
    a(f'global_load_dword v100, v6, {sp(X)}')
    for part, va, base in (('B', 5, 40), ('A', 4, 8)):
        a(f's_mov_b32 s14, {SPIN}')
        a(f'L_r{part}:')
        for k in range(8):
            a(f'global_load_dwordx4 {vr(base+4*k)}, v{va}, {sp(WS)} offset:{1024*k - 4096} sc1')
        a('s_sub_u32 s14, s14, 1')
        a(f's_cbranch_scc1 L_r{part}ok')
        a('s_waitcnt vmcnt(0)')
        tagcheck(list(range(base, base + 32)), 150, 96, 97)
        a(f's_cbranch_vccnz L_r{part}')
        a(f'L_r{part}ok:')
        a('s_waitcnt vmcnt(0)')
        for k in (4, 2, 1):
            for kk in range(k):
                for r in range(4):
                    a(f'v_add_f32 v{base+4*kk+r}, v{base+4*kk+r}, v{base+4*(kk+k)+r}')
        stamp(10 if part == 'B' else 11)
    for r in range(4): a(f'v_permlane32_swap_b32 v{8+r}, v{40+r}')
    for r in range(4): a(f'v_add_f32 v{8+r}, v{8+r}, v{40+r}')
    a('v_permlane16_swap_b32 v8, v10')
    a('v_permlane16_swap_b32 v9, v11')
    a('v_add_f32 v8, v8, v10')
    a('v_add_f32 v9, v9, v11')
    dpp('v_add_f32', 8, 8, 8, 'row_ror:8')
    dpp('v_add_f32', 9, 9, 9, 'row_ror:8')
    dpp('v_add_f32', 8, 8, 8, 'row_ror:4')
    dpp('v_add_f32', 9, 9, 9, 'row_ror:4')
    a('v_cvt_pk_bf16_f32 v8, v8, v9')
    a('v_mov_b32 v9, v8')
    a('v_permlane32_swap_b32 v8, v9')
    a('v_lshlrev_b32 v10, 16, v100')
    a('v_and_b32 v11, s43, v100')
    a('v_lshlrev_b32 v12, 16, v8')
    a('v_and_b32 v13, s43, v8')
    a('v_add_f32 v10, v10, v12')
    a('v_add_f32 v11, v11, v13')
    rnd2(10, 11, 12)
    a('v_lshlrev_b32 v12, 16, v9')
    a('v_and_b32 v13, s43, v9')
    a('v_add_f32 v10, v10, v12')
    a('v_add_f32 v11, v11, v13')
    a('v_cvt_pk_bf16_f32 v10, v10, v11')
    a('s_mov_b64 exec, 0x000f000f')
    a(f'global_store_dword v6, v10, {sp(OUT)}')
    a('s_cmp_lg_u32 s2, 0')
    a('s_cbranch_scc1 L_rend')
    a('s_mov_b64 exec, 1')
    a(f'v_mov_b32 v11, s{sT}')
    a('v_mov_b32 v12, 0')
    a(f'global_store_dword v12, v11, {sp(WS)} offset:{E_OFF} sc1')
    if stamps == 'dbl':
        a('s_memrealtime s[62:63]')
        a('s_waitcnt lgkmcnt(0)')
        a('s_sub_u32 s64, s62, s60')
        a('s_add_u32 s64, s64, s62')
        a('L_dbl:')
        a('s_memrealtime s[62:63]')
        a('s_waitcnt lgkmcnt(0)')
        a('s_cmp_lt_u32 s62, s64')
        a('s_cbranch_scc1 L_dbl')
    a('L_rend:')
    stamp(12)
    dump([10, 11, 12])
    a('s_endpgm')
    a('L_auxend:')
    if stamps:
        a('s_cmp_lg_u32 s3, 0')
        a('s_cbranch_scc1 L_end')
        dump([0, 1, 2, 3, 4, 7, 8, 9])
    a('L_end:')
    a('s_endpgm')
    lines, n = hazard.fix(a.l)
    body = '\n'.join(lines) + '\n'
    return kernel_file([(NAME + '_kernel', 256, 768, LDS_BYTES)], [(NAME + '_kernel', body, 168, 96, 168)])

if __name__ == '__main__':
    open('v1.s', 'w').write(gen(False))
    open('v1_st.s', 'w').write(gen(True))
    open('v1_dbl.s', 'w').write(gen('dbl'))
    open('v1_dbg.s', 'w').write(gen('dbg'))
```

```python
import sys
from asmlib import *
import hazard

E_OFF, H2M, S1P, H2D, H3 = 0x0, 0x1000, 0x10000, 0x50000, 0xA0000
STAMP = 0x3000000
L_XD1 = 0
L_Q = 4608
L_Z = 5120
L_CISS, L_CO, L_CS1, L_QF, L_CF = 5376, 5380, 5384, 5388, 5392
L_ML = 5440
L_XD2 = 5632
L_S1R = 8704
L_FR = 12800
L_O = 16896
LDS_BYTES = L_O + 8192
SPIN = 30000

def gen(stamps=False, ntKV='nt', ntW='nt', opt=None):
    opt = opt or {}
    a = Asm()
    def stamp(slot):
        if stamps == 'dbl' and slot != 0: return
        if stamps:
            a(f's_memrealtime s[{60+2*slot}:{61+2*slot}]')
    def dump(slots):
        if not stamps or stamps == 'dbl': return
        a('s_waitcnt lgkmcnt(0)')
        a('s_mov_b64 exec, 1')
        a(f's_lshl_b32 s58, s2, 6')
        a(f's_add_u32 s58, s58, {STAMP}')
        a('v_mov_b32 v1, s58')
        for s_ in slots:
            a(f'v_mov_b32 v2, s{60+2*s_}')
            a(f'global_store_dword v1, v2, s[38:39] offset:{4*s_}')
    X, K, V, WQ, WO, W1, W3, W2, OUT, WS = 16, 18, 20, 22, 24, 28, 30, 32, 34, 38
    sp = lambda r: f's[{r}:{r+1}]'
    vr = lambda r, n=4: f'v[{r}:{r+n-1}]'
    M0 = 160
    sT = 40
    def masks():
        a('v_and_b32 v6, 1, v0')
        a('v_lshlrev_b32 v6, 4, v6')
        a('v_mov_b32 v7, 0xffff')
        a('v_lshlrev_b32 v7, v6, v7')
        a('v_bfe_u32 v6, v0, 1, 2')
        for k in range(4):
            a(f'v_cmp_eq_u32 s[{46+2*k}:{47+2*k}], {k}, v6')
        for k in range(4):
            a(f'v_cndmask_b32 v{M0+k}, 0, v7, s[{46+2*k}:{47+2*k}]')
    def tag_setup(vT):
        a(f's_add_u32 s{sT}, s{sT}, 1')
        a('s_movk_i32 s41, 0x3ff')
        a(f's_and_b32 s42, s{sT}, s41')
        a(f'v_mov_b32 v{vT}, s42')
    def tagify(r, n, vT):
        for k in range(n):
            a(f'v_bfi_b32 v{r+k}, s41, v{vT}, v{r+k}')
    def tagcheck(regs, vT, t0):
        n = len(regs) // 2
        for k in range(n):
            a(f'v_bitop3_b32 v{t0+k}, v{regs[2*k]}, v{regs[2*k+1]}, v{vT} bitop3:0x7e')
        live = list(range(t0, t0 + n))
        while len(live) > 1:
            if len(live) >= 3:
                a(f'v_or3_b32 v{live[0]}, v{live[0]}, v{live[1]}, v{live[2]}')
                live = live[3:] + [live[0]]
            else:
                a(f'v_or_b32 v{live[0]}, v{live[0]}, v{live[1]}')
                live = [live[0]]
        a(f'v_and_b32 v{live[0]}, s41, v{live[0]}')
        a(f'v_cmp_ne_u32 vcc, 0, v{live[0]}')
    def xor16(op, r, t):
        a(f'v_mov_b32 v{t}, v{r}')
        a(f'v_permlane16_swap_b32 v{r}, v{t}')
        a(f'{op} v{r}, v{r}, v{t}')
    def xor32(op, r, t):
        a(f'v_mov_b32 v{t}, v{r}')
        a(f'v_permlane32_swap_b32 v{r}, v{t}')
        a(f'{op} v{r}, v{r}, v{t}')
    def dpp(op, d, s0, s1, ctl):
        if s1 is None: a(f'{op}_dpp v{d}, v{s0} {ctl} row_mask:0xf bank_mask:0xf')
        else: a(f'{op}_dpp v{d}, v{s0}, v{s1} {ctl} row_mask:0xf bank_mask:0xf')
    def rnd2(r0, r1, t):
        a(f'v_cvt_pk_bf16_f32 v{t}, v{r0}, v{r1}')
        a(f'v_lshlrev_b32 v{r0}, 16, v{t}')
        a(f'v_and_b32 v{r1}, s43, v{t}')
    def lds_wait(off, val, lab, vz, vt, sleep=1):
        a(f'{lab}:')
        a(f'ds_read_b32 v{vt}, v{vz} offset:{off}')
        a('s_waitcnt lgkmcnt(0)')
        a(f'v_readfirstlane_b32 s59, v{vt}')
        a(f's_cmp_ge_u32 s59, {val}')
        a(f's_cbranch_scc1 {lab}_ok')
        a(f's_sleep {sleep}')
        a(f's_branch {lab}')
        a(f'{lab}_ok:')
    def arrive(off, vz, vt):
        a(f'v_mov_b32 v{vt}, 1')
        a('s_mov_b64 exec, 1')
        a(f'ds_add_rtn_u32 v{vt}, v{vz}, v{vt} offset:{off}')
        a('s_mov_b64 exec, -1')
        a('s_waitcnt lgkmcnt(0)')
        a(f'v_readfirstlane_b32 s4, v{vt}')

    a('s_cmp_ge_u32 s2, 256')
    a('s_cbranch_scc1 L_end')
    stamp(0)
    a('s_load_dwordx16 s[16:31], s[0:1], 0')
    a('s_load_dwordx8 s[32:39], s[0:1], 64')
    a('v_lshrrev_b32 v1, 6, v0')
    a('v_and_b32 v0, 63, v0')
    a('v_readfirstlane_b32 s3, v1')
    a('v_mov_b32 v2, 0')
    a('v_mov_b32 v3, 0')
    a('v_lshlrev_b32 v4, 3, v0')
    a(f'ds_write_b64 v4, v[2:3] offset:{L_Z}')
    a('s_mov_b32 s43, 0xffff0000')
    a('v_and_b32 v6, 15, v0')
    a('v_lshrrev_b32 v7, 4, v0')
    KR, VR, BR, DR, OA = 8, 72, 136, 152, 164
    a('v_lshrrev_b32 v2, 1, v6')
    a('v_lshlrev_b32 v2, 8, v2')
    a('v_and_b32 v3, 1, v6')
    a('v_lshl_add_u32 v2, v3, 6, v2')
    a('v_lshl_add_u32 v2, v7, 4, v2')
    a('v_lshlrev_b32 v4, 4, v6')
    a('v_lshl_add_u32 v4, v7, 9, v4')
    a('s_lshr_b32 s6, s2, 3')
    a('s_lshl_b32 s4, s6, 23')
    a('s_and_b32 s5, s2, 7')
    a('s_lshl_b32 s5, s5, 17')
    a('s_add_u32 s4, s4, s5')
    a('s_lshl_b32 s5, s3, 14')
    a('s_add_u32 s4, s4, s5')
    a(f's_add_u32 s4, s4, {7340032 - 4*16384}')
    a('s_lshl_b32 s5, s3, 1')
    a('s_add_u32 s6, s6, s5')
    a('s_lshl_b32 s6, s6, 11')
    a('s_movk_i32 s10, 0x4000')
    a('s_mov_b32 s11, 0x20000')
    a('s_movk_i32 s14, 0x4000')
    a('s_mov_b32 s15, 0x20000')
    a('s_movk_i32 s7, 0x3800')
    for p in range(8):
        a(f's_and_b32 s{46+p}, s6, s7')
        if p < 7: a('s_addk_i32 s6, 0x800')
    a('s_cmp_lt_u32 s3, 4')
    a('s_waitcnt lgkmcnt(0)')
    a('s_barrier')
    a('s_cbranch_scc1 L_aux')
    a(f's_add_u32 s8, s{K}, s4')
    a(f's_addc_u32 s9, s{K+1}, 0')
    a(f's_add_u32 s12, s{V}, s4')
    a(f's_addc_u32 s13, s{V+1}, 0')
    for t in range(8):
        for jj in range(2):
            a(f'buffer_load_dwordx4 {vr(KR + 8*t + 4*jj)}, v2, s[8:11], s{46+t} offen offset:{128*jj} {ntKV}')
    for t in range(8):
        for u in range(2):
            a(f'buffer_load_dwordx4 {vr(VR + 8*t + 4*u)}, v4, s[12:15], s{46+t} offen offset:{256*u} {ntKV}')
    a('v_mov_b32 v1, 0')
    a('v_mov_b32 v2, 1')
    a('s_mov_b64 exec, 1')
    a(f'ds_add_u32 v1, v2 offset:{L_CISS}')
    a('s_mov_b64 exec, -1')
    a(f's_load_dword s{sT}, {sp(WS)}, {E_OFF}')
    a('v_bfe_u32 v2, v0, 3, 1')
    a('v_mul_u32_u24 v2, 0x202, v2')
    a('v_add_u32 v2, 0x100, v2')
    a('v_lshlrev_b32 v3, 16, v2')
    a('v_or_b32 v3, 0x0c0c, v3')
    a('v_or_b32 v2, 0x0c0c0000, v2')
    a('s_mov_b32 vcc_lo, 0xaaaaaaaa')
    a('s_mov_b32 vcc_hi, 0xaaaaaaaa')
    a('v_cndmask_b32 v2, v2, v3, vcc')
    a('v_mov_b32 v3, 0x0c0c0c0c')
    a('v_bfe_u32 v4, v0, 1, 2')
    for k in range(4):
        a(f'v_cmp_eq_u32 s[{46+2*k}:{47+2*k}], {k}, v4')
    for k in range(4):
        a(f'v_cndmask_b32 v{M0+k}, v3, v2, s[{46+2*k}:{47+2*k}]')
    a('v_bfe_u32 v2, v0, 1, 1')
    a('v_lshlrev_b32 v2, 8, v2')
    a('v_and_b32 v3, 1, v0')
    a('v_lshl_add_u32 v2, v3, 6, v2')
    a('v_lshl_add_u32 v7, v7, 4, v2')
    a('v_bfe_u32 v6, v0, 2, 2')
    a(f'v_mov_b32 v{BR}, {L_Z - L_Q}')
    for k in range(4):
        a(f'v_cmp_eq_u32 s[{46+2*k}:{47+2*k}], {k}, v6')
    for k in range(4):
        a(f'v_cndmask_b32 v{2+k}, v{BR}, v7, s[{46+2*k}:{47+2*k}]')
    a('s_mov_b32 s44, 0x3db504f3')
    a('s_mov_b32 s45, 0x3fb8aa3b')
    lds_wait(L_QF, 1, 'L_wq', 1, 6, 2)
    def bread(tq):
        b = BR + 8 * (tq & 1)
        a(f'ds_read_b128 {vr(b)}, v{2+tq} offset:{L_Q}')
        a(f'ds_read_b128 {vr(b+4)}, v{2+tq} offset:{L_Q+128}')
    bread(0); bread(1)
    for tq in range(4):
        a(f's_waitcnt lgkmcnt({2 if tq < 3 else 0})')
        b = BR + 8 * (tq & 1)
        for ac in range(2):
            p = 2 * tq + ac
            d = DR + 4 * ac
            a(f's_waitcnt vmcnt({30 - 2*p})')
            a(f'v_mfma_f32_16x16x32_bf16 {vr(d)}, {vr(KR+8*p)}, {vr(b)}, {"0" if tq == 0 else vr(d)}')
            a(f'v_mfma_f32_16x16x32_bf16 {vr(d)}, {vr(KR+8*p+4)}, {vr(b+4)}, {vr(d)}')
        if tq < 2: bread(tq + 2)
    Z0, Z1 = BR, BR + 1
    for ac in range(2):
        d = DR + 4 * ac
        a(f'v_cndmask_b32 v{d}, v{d}, v{d+3}, vcc')
        a(f'v_cndmask_b32 v{d+1}, v{d+2}, v{d+1}, vcc')
    dpp('v_add_f32', Z0, DR + 1, DR, 'quad_perm:[1,0,3,2]')
    dpp('v_add_f32', Z1, DR + 5, DR + 4, 'quad_perm:[1,0,3,2]')
    rnd2(Z0, Z1, 2)
    a(f'v_mul_f32 v{Z0}, s44, v{Z0}')
    a(f'v_mul_f32 v{Z1}, s44, v{Z1}')
    rnd2(Z0, Z1, 2)
    def redw(op, r, t):
        dpp(op, r, r, r, 'quad_perm:[1,0,3,2]')
        dpp(op, r, r, r, 'row_ror:4')
        dpp(op, r, r, r, 'row_ror:8')
        xor16(op, r, t)
        xor32(op, r, t)
    a(f'v_max_f32 v6, v{Z0}, v{Z1}')
    redw('v_max_f32', 6, 2)
    a('v_mul_f32 v6, s45, v6')
    a(f'v_fma_f32 v{Z0}, v{Z0}, s45, -v6')
    a(f'v_fma_f32 v{Z1}, v{Z1}, s45, -v6')
    a(f'v_exp_f32 v{Z0}, v{Z0}')
    a(f'v_exp_f32 v{Z1}, v{Z1}')
    a('s_sub_u32 s4, s3, 4')
    a('s_lshl_b32 s5, s4, 10')
    dpp('v_mov_b32', 2, Z0, None, 'quad_perm:[2,3,0,1]')
    dpp('v_mov_b32', 3, Z1, None, 'quad_perm:[2,3,0,1]')
    a(f'v_add_f32 v7, v{Z0}, v{Z1}')
    a(f'v_cvt_pk_bf16_f32 v{Z0}, v{Z0}, v2')
    a(f'v_cvt_pk_bf16_f32 v{Z1}, v{Z1}, v3')
    a('v_lshl_add_u32 v2, v0, 4, s5')
    a('s_lshl_b32 s5, s4, 2')
    a('v_lshl_add_u32 v3, v0, 5, s5')
    for s in range(16):
        p, u = s >> 1, s & 1
        tq, ac = p >> 1, p & 1
        w = BR + 2 + (s & 3)
        dpp('v_mov_b32', w, Z0 + ac, None, f'row_newbcast:{4*tq + u}')
        for k in range(4):
            a(f'v_perm_b32 v{KR+4*s+k}, v{w}, v{w}, v{M0+k}')
    redw('v_add_f32', 7, 4)
    a('s_mov_b64 exec, 5')
    a(f'ds_write_b32 v3, v6 offset:{L_ML}')
    a(f'ds_write_b32 v3, v7 offset:{L_ML+32}')
    a('s_mov_b64 exec, -1')
    for s in range(16):
        a(f's_waitcnt vmcnt({15 - s})')
        c = '0' if s == 0 else vr(OA)
        a(f'v_mfma_f32_16x16x32_bf16 {vr(OA)}, {vr(KR + 4*s)}, {vr(VR + 4*s)}, {c}')
    a('s_setprio 3')
    a(f'ds_write_b128 v2, {vr(OA)} offset:{L_O}')
    arrive(L_CO, 1, 4)
    a('s_cmp_lg_u32 s4, 7')
    a('s_cbranch_scc1 L_end')
    stamp(5)
    a('v_lshrrev_b32 v2, 5, v0')
    a('v_lshlrev_b32 v2, 6, v2')
    a('v_lshlrev_b32 v3, 4, v0')
    a(f'ds_read_b128 {vr(8)}, v2 offset:{L_ML}')
    a(f'ds_read_b128 {vr(12)}, v2 offset:{L_ML+16}')
    a(f'ds_read_b128 {vr(16)}, v2 offset:{L_ML+32}')
    a(f'ds_read_b128 {vr(20)}, v2 offset:{L_ML+48}')
    for w in range(8):
        a(f'ds_read_b128 {vr(24+4*w)}, v3 offset:{L_O + 1024*w}')
    tag_setup(60)
    a('s_lshr_b32 s4, s2, 3')
    a('s_and_b32 s5, s4, 15')
    a('s_lshr_b32 s4, s4, 4')
    a('s_lshl_b32 s4, s4, 3')
    a('s_and_b32 s6, s2, 7')
    a('s_add_u32 s4, s4, s6')
    a('s_lshl_b32 s6, s5, 14')
    a('s_lshl_b32 s7, s4, 8')
    a('s_add_u32 s6, s6, s7')
    a(f's_add_u32 s6, s6, {H2D}')
    a('s_lshl_b32 s7, s5, 9')
    a('s_lshl_b32 s8, s4, 4')
    a('s_add_u32 s7, s7, s8')
    a(f's_add_u32 s7, s7, {H2M}')
    a('v_lshl_add_u32 v62, v2, 2, s7')
    a('v_lshl_add_u32 v61, v2, 7, s6')
    a('v_bfe_u32 v5, v0, 3, 1')
    a('v_lshl_add_u32 v61, v5, 12, v61')
    a('v_and_b32 v5, 7, v0')
    a('v_lshl_add_u32 v61, v5, 5, v61')
    a('v_bfe_u32 v5, v0, 4, 1')
    a('v_lshl_add_u32 v61, v5, 4, v61')
    a('s_waitcnt lgkmcnt(8)')
    a('v_max3_f32 v64, v8, v9, v10')
    a('v_max3_f32 v65, v11, v12, v13')
    a('v_max3_f32 v64, v64, v14, v15')
    a('v_max_f32 v64, v64, v65')
    tagify(64, 1, 60)
    for w in range(8):
        a(f'v_sub_f32 v{8+w}, v{8+w}, v64')
    for w in range(8):
        a(f'v_exp_f32 v{8+w}, v{8+w}')
    a('v_mov_b32 v66, v64')
    for w in range(8):
        a(f's_waitcnt lgkmcnt({7-w})')
        for r in range(4):
            if w == 0: a(f'v_mul_f32 v{68+r}, v8, v{24+r}')
            else: a(f'v_fmac_f32 v{68+r}, v{8+w}, v{24+4*w+r}')
    tagify(68, 4, 60)
    a(f'global_store_dwordx4 v61, {vr(68)}, {sp(WS)} sc1')
    a('v_mul_f32 v65, v8, v16')
    for w in range(1, 8):
        a(f'v_fmac_f32 v65, v{8+w}, v{16+w}')
    tagify(65, 1, 60)
    a('v_mov_b32 v67, v65')
    a('s_mov_b32 exec_lo, 1')
    a('s_mov_b32 exec_hi, 1')
    a(f'global_store_dwordx4 v62, {vr(64)}, {sp(WS)} sc1')
    stamp(6)
    dump([5, 6])
    a('s_endpgm')

    a('L_aux:')
    a('s_setprio 3')
    a('v_mov_b32 v1, 0')
    RG, XV, AT, DA, VT = 8, 112, 132, 140, 150
    a('s_cmp_ge_u32 s2, 208')
    a('s_cbranch_scc1 L_nos1')
    a('v_lshrrev_b32 v3, 5, v0')
    a('v_mul_u32_u24 v3, 1152, v3')
    a('v_and_b32 v4, 31, v0')
    a('v_mul_u32_u24 v4, 36, v4')
    a('v_add_u32 v3, v3, v4')
    XR = 80
    a(f'global_load_dwordx3 {vr(XR,3)}, v3, {sp(X)}')
    a(f'global_load_dwordx3 {vr(XR+4,3)}, v3, {sp(X)} offset:12')
    a(f'global_load_dwordx3 {vr(XR+8,3)}, v3, {sp(X)} offset:24')
    raw = [XR, XR+1, XR+2, XR+4, XR+5, XR+6, XR+8, XR+9, XR+10]
    a('s_and_b32 s5, s2, 1')
    a('s_lshr_b32 s4, s2, 1')
    a('s_lshl_b32 s7, s4, 7')
    a('s_movk_i32 s6, 9216')
    a('s_cmp_lt_u32 s4, 32')
    a('s_cselect_b32 s6, 8192, s6')
    a(f's_cselect_b32 s8, s{WQ}, s{W1}')
    a(f's_cselect_b32 s9, s{WQ+1}, s{W1+1}')
    a('s_cselect_b32 s12, 0, 32')
    a('s_cmp_lt_u32 s4, 68')
    a(f's_cselect_b32 s8, s8, s{W3}')
    a(f's_cselect_b32 s9, s9, s{W3+1}')
    a('s_cselect_b32 s12, s12, 0x44')
    a('s_sub_u32 s4, s4, s12')
    a('s_lshl_b32 s4, s4, 8')
    a('s_lshl_b32 s12, s5, 2')
    a('s_add_u32 s12, s12, s3')
    a('s_mul_i32 s15, s12, 72')
    a('s_mul_i32 s12, s15, s6')
    a('s_add_u32 s4, s4, s12')
    a('s_add_u32 s8, s8, s4')
    a('s_addc_u32 s9, s9, 0')
    a('s_lshl_b32 s13, s6, 1')
    a('v_mul_u32_u24 v2, s13, v7')
    a('v_lshl_add_u32 v2, v6, 4, v2')
    a('s_mul_i32 s13, s6, 7')
    for k in range(18):
        a(f'global_load_dwordx4 {vr(RG+4*k)}, v2, s[8:9] {ntW}')
        if k < 17: a(f'v_add_u32 v2, s{13 if k % 2 else 6}, v2')
    a(f's_load_dword s{sT}, {sp(WS)}, {E_OFF}')
    masks()
    a('v_lshlrev_b32 v3, 1, v3')
    a('s_waitcnt vmcnt(18)')
    U = 92
    for k in range(9):
        a(f'v_lshlrev_b32 v{U+2*k}, 16, v{raw[k]}')
        a(f'v_and_b32 v{U+2*k+1}, s43, v{raw[k]}')
    def red32(r, t):
        dpp('v_add_f32', r, r, r, 'quad_perm:[1,0,3,2]')
        dpp('v_add_f32', r, r, r, 'quad_perm:[2,3,0,1]')
        dpp('v_add_f32', r, r, r, 'row_half_mirror')
        dpp('v_add_f32', r, r, r, 'row_mirror')
        xor16('v_add_f32', r, t)
    T0, T1, T2, T3 = 80, 81, 82, 83
    a(f'v_add_f32 v{T0}, v{U}, v{U+1}')
    for k in range(2, 18): a(f'v_add_f32 v{T0}, v{T0}, v{U+k}')
    red32(T0, T1)
    a('s_mov_b32 s14, 0x3ae38e39')
    a(f'v_mul_f32 v{T0}, s14, v{T0}')
    a(f'v_sub_f32 v{T1}, v{U}, v{T0}')
    a(f'v_mul_f32 v{T2}, v{T1}, v{T1}')
    for k in range(1, 18):
        a(f'v_sub_f32 v{T1}, v{U+k}, v{T0}')
        a(f'v_fmac_f32 v{T2}, v{T1}, v{T1}')
    red32(T2, T1)
    a(f'v_mul_f32 v{T2}, s14, v{T2}')
    rnd2(T0, T2, T1)
    a(f'v_add_f32 v{T2}, 0x3727c5ac, v{T2}')
    rnd2(T2, T3, T1)
    a(f'v_sqrt_f32 v{T2}, v{T2}')
    rnd2(T2, T3, T1)
    a(f'v_rcp_f32 v{T2}, v{T2}')
    for k in range(0, 18, 2):
        a(f'v_sub_f32 v{U+k}, v{U+k}, v{T0}')
        a(f'v_sub_f32 v{U+k+1}, v{U+k+1}, v{T0}')
        rnd2(U + k, U + k + 1, T1)
        a(f'v_mul_f32 v{U+k}, v{U+k}, v{T2}')
        a(f'v_mul_f32 v{U+k+1}, v{U+k+1}, v{T2}')
        a(f'v_cvt_pk_bf16_f32 v{U+k}, v{U+k}, v{U+k}')
        a(f'v_cvt_pk_bf16_f32 v{U+k+1}, v{U+k+1}, v{U+k+1}')
        a(f'ds_write_b64 v3, {vr(U+k,2)} offset:{L_XD1 + 4*k}')
    stamp(1)
    a('v_bfe_u32 v3, v0, 3, 1')
    a('v_mul_u32_u24 v3, 2304, v3')
    a('v_lshrrev_b32 v4, 4, v0')
    a('v_lshl_add_u32 v3, v4, 3, v3')
    a('s_lshl_b32 s15, s15, 2')
    a('v_add_u32 v3, s15, v3')
    for T in range(9):
        a(f'ds_read_b64 {vr(XV+2*T,2)}, v3 offset:{L_XD1 + 32*T}')
    a('s_lshl_b32 s4, s3, 10')
    a('v_lshl_add_u32 v4, v0, 4, s4')
    a('s_waitcnt lgkmcnt(0)')
    tag_setup(VT)
    def s1and(k):
        for q in range(4):
            a(f'v_and_b32 v{AT + 4*(k&1) + q}, v{XV+k}, v{M0+q}')
    s1and(0)
    for k in range(18):
        if k < 17: s1and(k + 1)
        a(f's_waitcnt vmcnt({17-k})')
        a(f'v_mfma_f32_16x16x32_bf16 {vr(DA)}, {vr(AT+4*(k&1))}, {vr(RG+4*k)}, {"0" if k == 0 else vr(DA)}')
    a(f'ds_write_b128 v4, {vr(DA)} offset:{L_S1R}')
    arrive(L_CS1, 1, 5)
    stamp(2)
    a('s_cmp_lg_u32 s4, 3')
    a('s_cbranch_scc1 L_s1done')
    a('v_lshlrev_b32 v4, 4, v0')
    for w in range(4):
        a(f'ds_read_b128 {vr(8+4*w)}, v4 offset:{L_S1R + 1024*w}')
    a('s_mul_i32 s4, s5, 26624')
    a('s_add_u32 s4, s4, s7')
    a('s_lshl_b32 s4, s4, 2')
    a(f's_add_u32 s4, s4, {S1P}')
    a('v_lshrrev_b32 v3, 5, v0')
    a('v_mul_u32_u24 v3, 53248, v3')
    a('v_and_b32 v4, 15, v0')
    a('v_lshl_add_u32 v3, v4, 5, v3')
    a('v_bfe_u32 v4, v0, 4, 1')
    a('v_lshl_add_u32 v3, v4, 4, v3')
    a('v_add_u32 v3, s4, v3')
    a('s_waitcnt lgkmcnt(0)')
    for r in range(4):
        a(f'v_add_f32 v{8+r}, v{8+r}, v{12+r}')
        a(f'v_add_f32 v{16+r}, v{16+r}, v{20+r}')
    for r in range(4): a(f'v_add_f32 v{8+r}, v{8+r}, v{16+r}')
    tagify(8, 4, VT)
    a(f'global_store_dwordx4 v3, {vr(8)}, {sp(WS)} sc1')
    a('s_nop 1')
    a('s_branch L_s1done')
    a('L_nos1:')
    a(f's_load_dword s{sT}, {sp(WS)}, {E_OFF}')
    masks()
    a('s_waitcnt lgkmcnt(0)')
    tag_setup(VT)
    arrive(L_CS1, 1, 5)
    stamp(1); stamp(2)
    a('L_s1done:')
    a('s_cmp_lg_u32 s3, 0')
    a('s_cbranch_scc1 L_noq')
    a('s_lshr_b32 s4, s2, 3')
    a('s_lshr_b32 s5, s4, 4')
    a('s_and_b32 s4, s4, 15')
    a('s_mul_i32 s5, s5, 53248')
    a('s_lshl_b32 s4, s4, 10')
    a('s_add_u32 s4, s4, s5')
    a(f's_add_u32 s4, s4, {S1P}')
    a('v_lshl_add_u32 v4, v0, 4, s4')
    a('v_add_u32 v5, 106496, v4')
    a('v_lshlrev_b32 v3, 3, v0')
    if opt.get('qtrig', 4): lds_wait(L_CISS, opt.get('qtrig', 4), 'L_wq4', 1, 26, 3)
    a(f's_mov_b32 s14, {SPIN}')
    a('L_qloop:')
    a(f'global_load_dwordx4 {vr(24)}, v4, {sp(WS)} sc1')
    a(f'global_load_dwordx4 {vr(28)}, v5, {sp(WS)} sc1')
    a('s_sub_u32 s14, s14, 1')
    a('s_cbranch_scc1 L_qok')
    a('s_waitcnt vmcnt(0)')
    tagcheck(list(range(24, 32)), VT, 32)
    a('s_cbranch_vccnz L_qloop')
    a('L_qok:')
    a('s_waitcnt vmcnt(0)')
    for r in range(4): a(f'v_add_f32 v{24+r}, v{24+r}, v{28+r}')
    a('v_cvt_pk_bf16_f32 v24, v24, v25')
    a('v_cvt_pk_bf16_f32 v25, v26, v27')
    lds_wait(L_CS1, 4, 'L_wcs1', 1, 26)
    a('v_mov_b32 v26, 1')
    a(f'ds_write_b64 v3, v[24:25] offset:{L_Q}')
    a(f'ds_write_b32 v1, v26 offset:{L_QF}')
    stamp(3)
    a('L_noq:')
    a('s_cmp_ge_u32 s2, 252')
    a('s_cbranch_scc1 L_auxend')
    a('v_and_b32 v6, 15, v0')
    a('v_lshrrev_b32 v7, 4, v0')
    a('s_mul_i32 s46, s3, 768')
    a('s_cmp_ge_u32 s2, 144')
    a('s_cbranch_scc1 L_w2dec')
    a('s_and_b32 s4, s2, 7')
    a('s_lshr_b32 s5, s2, 3')
    a('s_lshl_b32 s4, s4, 1')
    a('s_cmp_ge_u32 s5, 9')
    a('s_cselect_b32 s6, 9, 0')
    a('s_addc_u32 s47, s4, 0')
    a('s_sub_u32 s48, s5, s6')
    a('s_lshl_b32 s4, s47, 2')
    a('s_add_u32 s4, s4, s3')
    a('s_mul_i32 s4, s4, 73728')
    a(f's_mov_b32 s8, s{WO}')
    a(f's_mov_b32 s9, s{WO+1}')
    a('s_branch L_fdec')
    a('L_w2dec:')
    a('s_sub_u32 s4, s2, 144')
    a('s_mul_i32 s5, s4, 57')
    a('s_lshr_b32 s5, s5, 9')
    a('s_mul_i32 s6, s5, 9')
    a('s_sub_u32 s48, s4, s6')
    a('s_add_u32 s47, s5, 16')
    a('s_lshl_b32 s4, s5, 2')
    a('s_add_u32 s4, s4, s3')
    a('s_mul_i32 s5, s4, 384')
    a(f's_add_u32 s5, s5, {S1P + 16384}')
    a('v_lshrrev_b32 v2, 5, v0')
    a('v_and_b32 v3, 31, v0')
    a('v_mul_u32_u24 v102, 53248, v2')
    a('v_lshl_add_u32 v102, v3, 4, v102')
    a('v_add_u32 v102, s5, v102')
    a('v_add_u32 v103, 106496, v102')
    a('v_add_u32 v104, 18432, v102')
    a('v_add_u32 v105, 18432, v103')
    a('v_mul_u32_u24 v100, 384, v2')
    a('v_lshl_add_u32 v100, v3, 4, v100')
    a('v_add_u32 v100, s46, v100')
    if opt.get('gutrig', 6): lds_wait(L_CISS, opt.get('gutrig', 6), 'L_wg6', 1, 5, 3)
    a(f's_mov_b32 s14, {SPIN}')
    a('s_mov_b32 exec_lo, 0x00ffffff')
    a('s_mov_b32 exec_hi, 0x00ffffff')
    a('L_guloop:')
    for k in range(4):
        a(f'global_load_dwordx4 {vr(80+4*k)}, v{102+k}, {sp(WS)} sc1')
    a('s_sub_u32 s14, s14, 1')
    a('s_cbranch_scc1 L_guok')
    a('s_waitcnt vmcnt(0)')
    tagcheck(list(range(80, 96)), VT, 60)
    a('s_cbranch_vccnz L_guloop')
    a('L_guok:')
    a('s_waitcnt vmcnt(0)')
    for r in range(4):
        a(f'v_add_f32 v{80+r}, v{80+r}, v{84+r}')
        a(f'v_add_f32 v{88+r}, v{88+r}, v{92+r}')
    rnd2(80, 81, 96); rnd2(82, 83, 97); rnd2(88, 89, 96); rnd2(90, 91, 97)
    a('s_mov_b32 s45, 0xbfb8aa3b')
    for r in range(4): a(f'v_mul_f32 v{84+r}, s45, v{80+r}')
    for r in range(4): a(f'v_exp_f32 v{84+r}, v{84+r}')
    for r in range(4): a(f'v_add_f32 v{84+r}, 1.0, v{84+r}')
    for r in range(4): a(f'v_rcp_f32 v{84+r}, v{84+r}')
    for r in range(4): a(f'v_mul_f32 v{80+r}, v{80+r}, v{84+r}')
    rnd2(80, 81, 96); rnd2(82, 83, 97)
    for r in range(4): a(f'v_mul_f32 v{80+r}, v{80+r}, v{88+r}')
    for r in range(4): a(f'v_cvt_pk_bf16_f32 v{80+r}, v{80+r}, v{80+r}')
    a(f'ds_write_b128 v100, {vr(80)} offset:{L_XD2}')
    a('s_mov_b64 exec, -1')
    a('s_mul_i32 s4, s4, 110592')
    a(f's_mov_b32 s8, s{W2}')
    a(f's_mov_b32 s9, s{W2+1}')
    a('L_fdec:')
    a('s_lshl_b32 s5, s48, 7')
    a('s_add_u32 s4, s4, s5')
    a('s_add_u32 s8, s8, s4')
    a('s_addc_u32 s9, s9, 0')
    a('v_lshrrev_b32 v2, 3, v0')
    a('v_mul_u32_u24 v2, 4608, v2')
    a('v_and_b32 v3, 7, v0')
    a('v_lshl_add_u32 v2, v3, 4, v2')
    a('v_add_u32 v3, 36864, v2')
    a('v_add_u32 v4, 73728, v2')
    a('s_lshl_b32 s4, s48, 13')
    a('s_lshl_b32 s5, s47, 7')
    a('s_add_u32 s4, s4, s5')
    a(f's_add_u32 s4, s4, {H3}')
    a('v_lshrrev_b32 v101, 5, v0')
    a('v_mul_u32_u24 v101, 18, v101')
    a('v_bfe_u32 v5, v0, 2, 1')
    a('v_add_lshl_u32 v101, v101, v5, 12')
    a('v_and_b32 v5, 3, v0')
    a('v_lshl_add_u32 v101, v5, 5, v101')
    a('v_bfe_u32 v5, v0, 4, 1')
    a('v_lshl_add_u32 v101, v5, 4, v101')
    a('v_add_u32 v101, s4, v101')
    a('v_bfe_u32 v5, v0, 3, 1')
    a('v_mul_u32_u24 v106, 384, v5')
    a('v_lshl_add_u32 v106, v7, 5, v106')
    a('v_add_u32 v106, s46, v106')
    a('s_lshl_b32 s4, s3, 10')
    a('v_lshl_add_u32 v107, v0, 4, s4')
    lds_wait(L_CISS, 8, 'L_wiss', 1, 5, 2)
    stamp(4)
    for t in range(8):
        a(f'global_load_dwordx4 {vr(8+4*t)}, v{2 + (t>>2)}, s[8:9] offset:{1152*(t&3)} {ntW}')
    a('s_cmp_ge_u32 s2, 144')
    a('s_cbranch_scc1 L_w2ld')
    a('s_lshl_b32 s4, s47, 14')
    a('s_lshl_b32 s5, s3, 12')
    a('s_add_u32 s4, s4, s5')
    a(f's_add_u32 s4, s4, {H2D}')
    a('v_lshl_add_u32 v2, v0, 4, s4')
    a('s_lshl_b32 s4, s47, 9')
    a('s_lshr_b32 s5, s3, 1')
    a('s_lshl_b32 s5, s5, 8')
    a('s_add_u32 s4, s4, s5')
    a(f's_add_u32 s4, s4, {H2M}')
    a('v_add_u32 v3, v0, v7')
    a('v_and_b32 v3, 7, v3')
    a('v_and_b32 v4, 8, v0')
    a('v_or_b32 v3, v3, v4')
    a('v_lshl_add_u32 v3, v3, 4, s4')
    a('v_lshrrev_b32 v4, 5, v0')
    a('v_mul_u32_u24 v100, 384, v4')
    a('v_lshl_add_u32 v100, v6, 4, v100')
    a('v_and_b32 v4, 1, v7')
    a('v_lshl_add_u32 v100, v4, 3, v100')
    a('v_add_u32 v100, s46, v100')
    a(f's_mov_b32 s14, {SPIN}')
    a('L_h2loop:')
    a(f'global_load_dwordx4 {vr(76)}, v3, {sp(WS)} sc1')
    for k in range(4):
        a(f'global_load_dwordx4 {vr(80+4*k)}, v2, {sp(WS)} offset:{1024*k} sc1')
    a('s_sub_u32 s14, s14, 1')
    a('s_cbranch_scc1 L_h2ok')
    a('s_waitcnt vmcnt(0)')
    tagcheck(list(range(76, 96)), VT, 60)
    a('s_cbranch_vccnz L_h2loop')
    a('L_h2ok:')
    a('s_waitcnt vmcnt(0)')
    def red8(op, r):
        dpp(op, r, r, r, 'quad_perm:[1,0,3,2]')
        dpp(op, r, r, r, 'quad_perm:[2,3,0,1]')
        dpp(op, r, r, r, 'row_half_mirror')
    red8('v_max_f32', 78)
    a('v_sub_f32 v76, v76, v78')
    a('v_exp_f32 v76, v76')
    a('v_mul_f32 v77, v76, v77')
    red8('v_add_f32', 77)
    a('v_rcp_f32 v77, v77')
    a('v_mul_f32 v76, v76, v77')
    for b in range(2):
        for r in range(4):
            dpp('v_mul_f32', 80 + 8*b + r, 76, 80 + 8*b + r, f'row_newbcast:{8*b}')
    for b in range(2):
        for r in range(4):
            dpp('v_fmac_f32', 80 + 8*b + r, 76, 84 + 8*b + r, f'row_newbcast:{8*b+4}')
    for r in range(4): a(f'v_permlane32_swap_b32 v{80+r}, v{88+r}')
    for r in range(4): a(f'v_add_f32 v{80+r}, v{80+r}, v{88+r}')
    a('v_permlane16_swap_b32 v80, v82')
    a('v_permlane16_swap_b32 v81, v83')
    a('v_add_f32 v80, v80, v82')
    a('v_add_f32 v81, v81, v83')
    a('v_cvt_pk_bf16_f32 v80, v80, v80')
    a('v_cvt_pk_bf16_f32 v81, v81, v81')
    a(f'ds_write_b64 v100, v[80:81] offset:{L_XD2}')
    stamp(7)
    FX, FA, D0, D1 = 108, 60, 140, 144
    def fin(t0, t1, counted):
        def ands(t):
            for rho in range(2):
                for q in range(4):
                    a(f'v_and_b32 v{FA + 8*(t&1) + 4*rho + q}, v{FX + 8*(t>>2) + 4*rho + (t&3)}, v{M0+q}')
        ands(t0)
        for t in range(t0, t1):
            if t + 1 < t1: ands(t + 1)
            if counted is not None: a(f's_waitcnt vmcnt({counted - t})')
            a(f'v_mfma_f32_16x16x32_bf16 {vr(D0)}, {vr(FA+8*(t&1))}, {vr(8+4*t)}, {"0" if t == 0 else vr(D0)}')
            a(f'v_mfma_f32_16x16x32_bf16 {vr(D1)}, {vr(FA+8*(t&1)+4)}, {vr(8+4*t)}, {"0" if t == 0 else vr(D1)}')
    for T in range(2):
        a(f'ds_read_b128 {vr(FX+8*T)}, v106 offset:{L_XD2 + 128*T}')
        a(f'ds_read_b128 {vr(FX+8*T+4)}, v106 offset:{L_XD2 + 128*T + 16}')
    a('s_waitcnt lgkmcnt(0)')
    fin(0, 8, None)
    a('s_branch L_fred')
    a('L_w2ld:')
    for t in range(8, 12):
        a(f'global_load_dwordx4 {vr(8+4*t)}, v4, s[8:9] offset:{1152*(t&3)} {ntW}')
    for T in range(3):
        a(f'ds_read_b128 {vr(FX+8*T)}, v106 offset:{L_XD2 + 128*T}')
        a(f'ds_read_b128 {vr(FX+8*T+4)}, v106 offset:{L_XD2 + 128*T + 16}')
    a('s_waitcnt lgkmcnt(0)')
    fin(0, 12, 11)
    a('L_fred:')
    a('s_mov_b32 vcc_lo, 0xff00ff00')
    a('s_mov_b32 vcc_hi, 0xff00ff00')
    a('s_nop 5')
    for r in range(4): a(f'v_cndmask_b32 v{D0+r}, v{D0+r}, v{D1+r}, vcc')
    a(f'ds_write_b128 v107, {vr(D0)} offset:{L_FR}')
    arrive(L_CF, 1, 5)
    stamp(8)
    a('s_cmp_lg_u32 s4, 3')
    a('s_cbranch_scc1 L_fdone')
    a('v_lshlrev_b32 v4, 4, v0')
    for w in range(4):
        a(f'ds_read_b128 {vr(8+4*w)}, v4 offset:{L_FR + 1024*w}')
    a('s_waitcnt lgkmcnt(2)')
    for r in range(4): a(f'v_add_f32 v{8+r}, v{8+r}, v{12+r}')
    a('s_waitcnt lgkmcnt(0)')
    for r in range(4): a(f'v_add_f32 v{16+r}, v{16+r}, v{20+r}')
    for r in range(4): a(f'v_add_f32 v{8+r}, v{8+r}, v{16+r}')
    for r in range(4): dpp('v_add_f32', 8 + r, 8 + r, 8 + r, 'row_ror:8')
    tagify(8, 4, VT)
    a('s_mov_b32 exec_lo, 0x00ff00ff')
    a('s_mov_b32 exec_hi, 0x00ff00ff')
    a(f'global_store_dwordx4 v101, {vr(8)}, {sp(WS)} sc1')
    a('s_mov_b64 exec, -1')
    if stamps and stamps != 'dbl':
        stamp(9)
        dump([9])
        a('s_mov_b64 exec, -1')
    a('L_fdone:')
    a('s_cmp_lg_u32 s3, 1')
    a('s_cbranch_scc1 L_auxend')
    a('s_sub_u32 s4, s2, 144')
    a('s_cmp_ge_u32 s4, 36')
    a('s_cbranch_scc1 L_auxend')
    a('s_lshl_b32 s5, s4, 12')
    a(f's_add_u32 s5, s5, {H3}')
    a('v_lshl_add_u32 v4, v0, 4, s5')
    a('v_and_b32 v6, 7, v0')
    a('v_lshlrev_b32 v6, 3, v6')
    a('v_bfe_u32 v7, v0, 4, 1')
    a('v_lshl_add_u32 v6, v7, 2, v6')
    a('s_lshl_b32 s5, s4, 6')
    a('v_add_u32 v6, s5, v6')
    a(f'global_load_dword v100, v6, {sp(X)}')
    for r in range(4): a(f'v_mov_b32 v{36+r}, v{VT}')
    a(f's_mov_b32 s14, {SPIN}')
    a('L_rl:')
    for k in range(3):
        a(f'global_load_dwordx4 {vr(24+4*k)}, v4, {sp(WS)} offset:{1024*k} sc1')
    a('s_mov_b32 exec_hi, 0')
    a(f'global_load_dwordx4 {vr(36)}, v4, {sp(WS)} offset:3072 sc1')
    a('s_mov_b64 exec, -1')
    a('s_sub_u32 s14, s14, 1')
    a('s_cbranch_scc1 L_rok')
    a('s_waitcnt vmcnt(0)')
    tagcheck(list(range(24, 40)), VT, 60)
    a('s_cbranch_vccnz L_rl')
    a('L_rok:')
    a('s_waitcnt vmcnt(0)')
    stamp(11)
    for r in range(4): a(f'v_add_f32 v{24+r}, v{24+r}, v{28+r}')
    for r in range(4): a(f'v_add_f32 v{32+r}, v{32+r}, v{36+r}')
    for r in range(4): a(f'v_permlane32_swap_b32 v{24+r}, v{32+r}')
    for r in range(4): a(f'v_add_f32 v{24+r}, v{24+r}, v{32+r}')
    a('v_permlane16_swap_b32 v24, v26')
    a('v_permlane16_swap_b32 v25, v27')
    a('v_add_f32 v8, v24, v26')
    a('v_add_f32 v9, v25, v27')
    a('v_lshlrev_b32 v10, 16, v100')
    a('v_and_b32 v11, s43, v100')
    dpp('v_add_f32', 8, 8, 8, 'row_ror:8')
    dpp('v_add_f32', 9, 9, 9, 'row_ror:8')
    a('v_cvt_pk_bf16_f32 v8, v8, v9')
    a('v_mov_b32 v9, v8')
    a('v_permlane32_swap_b32 v8, v9')
    a('v_lshlrev_b32 v12, 16, v8')
    a('v_and_b32 v13, s43, v8')
    a('v_add_f32 v10, v10, v12')
    a('v_add_f32 v11, v11, v13')
    rnd2(10, 11, 12)
    a('v_lshlrev_b32 v12, 16, v9')
    a('v_and_b32 v13, s43, v9')
    a('v_add_f32 v10, v10, v12')
    a('v_add_f32 v11, v11, v13')
    a('v_cvt_pk_bf16_f32 v10, v10, v11')
    a('s_mov_b64 exec, 0x00ff00ff')
    a(f'global_store_dword v6, v10, {sp(OUT)}')
    a('s_cmp_lg_u32 s4, 0')
    a('s_cbranch_scc1 L_rend')
    a('s_mov_b64 exec, 1')
    a(f'v_mov_b32 v11, s{sT}')
    a(f'global_store_dword v1, v11, {sp(WS)} offset:{E_OFF} sc1')
    if stamps == 'dbl':
        a('s_memrealtime s[62:63]')
        a('s_waitcnt lgkmcnt(0)')
        a('s_sub_u32 s64, s62, s60')
        a('s_add_u32 s64, s64, s62')
        a('L_dbl:')
        a('s_memrealtime s[62:63]')
        a('s_waitcnt lgkmcnt(0)')
        a('s_cmp_lt_u32 s62, s64')
        a('s_cbranch_scc1 L_dbl')
    a('L_rend:')
    stamp(12)
    dump([11, 12])
    a('s_endpgm')
    a('L_auxend:')
    if stamps:
        a('s_cmp_lg_u32 s3, 0')
        a('s_cbranch_scc1 L_end')
        dump([0, 1, 2, 3, 4, 7, 8])
    a('L_end:')
    a('s_endpgm')
    lines, n = hazard.fix(a.l)
    body = '\n'.join(lines) + '\n'
    return kernel_file([(NAME + '_kernel', 256, 768, LDS_BYTES)], [(NAME + '_kernel', body, 168, 96, 168)])

if __name__ == '__main__':
    open('v2.s', 'w').write(gen(False))
    open('v2_st.s', 'w').write(gen(True))
    open('v2_dbl.s', 'w').write(gen('dbl'))
    open('v2b_st.s', 'w').write(gen(True, opt=dict(qtrig=2, gutrig=4)))
```
